```python
import torch

def _softmax(x, axis=-1):
    return torch.softmax(x, dim=axis)

def _gelu(x):
    return torch.nn.functional.gelu(x, approximate='tanh')

def _silu(x):
    return torch.nn.functional.silu(x)

def _sigmoid(x):
    return torch.sigmoid(x)

def _layernorm(x, axis=-1, eps=1e-05):
    m = x.mean(dim=axis, keepdim=True)
    v = x.var(dim=axis, keepdim=True, unbiased=False)
    return (x - m) / torch.sqrt(v + eps)

def _scatter_add(tgt, idx, src, axis=0):
    return tgt.clone().index_add_(axis, idx, src)

def _segment_sum(src, seg, n):
    out = torch.zeros((n,) + src.shape[1:], dtype=src.dtype)
    return out.index_add_(0, seg, src)

def _pad(x, pw):
    flat = tuple((v for pair in reversed(pw) for v in pair))
    return torch.nn.functional.pad(x, flat)
kernel_name = 'adaLN_cond__mha_block_cached__dense_activation_silu__prompt'

def setup_inputs():

    _w = lambda a: (lambda t: t.to(torch.bfloat16) if t.is_floating_point() else t)(torch.as_tensor(a))

    def _A_setup():
        B, Sq, D = (1, 2048, 576)
        H, Sk, Dh = (32, 2048, 128)
        return {'x': _w((lambda *s: torch.randn(*s, dtype=torch.bfloat16) * 0.1)(B, Sq, D)), 'k_cache': _w((lambda *s: torch.randn(*s, dtype=torch.bfloat16) * 0.8)(B, H, Sk, Dh)), 'v_cache': _w((lambda *s: torch.randn(*s, dtype=torch.bfloat16) * 3.2)(B, H, Sk, Dh)), 'wq': _w((lambda *s: torch.randn(*s, dtype=torch.bfloat16) * 0.8)(D, H * Dh) * D ** (-0.5)), 'wo': _w((lambda *s: torch.randn(*s, dtype=torch.bfloat16) * 3.2)(H * Dh, D) * (H * Dh) ** (-0.5))}
    _A_in = _A_setup()

    def _B_setup():
        B, S, D, F = (1, 2048, 576, 4608)
        return {'x': _w((lambda *s: torch.randn(*s, dtype=torch.bfloat16) * 0.1)(B, S, D)), 'w1': _w((lambda *s: torch.randn(*s, dtype=torch.bfloat16) * 3.2)(D, F) * D ** (-0.5)), 'w2': _w((lambda *s: torch.randn(*s, dtype=torch.bfloat16) * 3.2)(F, D) * F ** (-0.5))}
    _B_in = _B_setup()
    return {'A_x': _A_in['x'], 'A_k_cache': _A_in['k_cache'], 'A_v_cache': _A_in['v_cache'], 'A_wq': _A_in['wq'], 'A_wo': _A_in['wo'], 'B_x': _B_in['x'], 'B_w1': _B_in['w1'], 'B_w2': _B_in['w2'], 'c': _w((lambda *s: torch.randn(*s, dtype=torch.bfloat16) * 0.2)(1, 576) * 8.0), 'w_mod': _w((lambda *s: torch.randn(*s, dtype=torch.bfloat16) * 0.2)(576, 6 * 576) * 576 ** (-0.5) * 8.0)}

def reference(A_x, A_k_cache, A_v_cache, A_wq, A_wo, B_x, B_w1, B_w2, c, w_mod):

    def _A_ref(x, k_cache, v_cache, wq, wo):
        B, Sq, D = x.shape
        H, Dh = (32, 128)
        q = (lambda x, *d: x.permute(*d))((x @ wq).reshape(B, Sq, H, Dh), 0, 2, 1, 3)
        scores = torch.einsum('bhqd,bhkd->bhqk', q, k_cache) * Dh ** (-0.5)
        p = _softmax(scores, axis=-1)
        o = torch.einsum('bhqk,bhkd->bhqd', p, v_cache)
        return (lambda x, *d: x.permute(*d))(o, 0, 2, 1, 3).reshape(B, Sq, H * Dh) @ wo

    def _B_ref(x, w1, w2):
        h = torch.einsum('bsd,df->bsf', x, w1)
        h = _silu(h)
        out = torch.einsum('bsf,fd->bsd', h, w2)
        return out
    x = A_x
    mod = (_silu(c) @ w_mod).reshape(c.shape[0], 6, 1, -1)
    sa, ca, ga, sb, cb, gb = (mod[:, 0].clone(), mod[:, 1].clone(), mod[:, 2].clone(), mod[:, 3].clone(), mod[:, 4].clone(), mod[:, 5].clone())
    h = _layernorm(x, axis=-1) * (1 + ca) + sa
    x = x + ga * _A_ref(h, A_k_cache, A_v_cache, A_wq, A_wo)
    h = _layernorm(x, axis=-1) * (1 + cb) + sb
    x = x + gb * _B_ref(h, B_w1, B_w2)
    return x
```

```python
from gen_common import *

class VM:
    def __init__(self): self.q = []
    def issue(self, tag): self.q.append(tag)
    def wait_n(self, tag):
        idx = max(i for i, t in enumerate(self.q) if t == tag)
        return len(self.q) - 1 - idx

QSCALE = 0x3e0293ee
THR = 0x4b800000

vLANE, vL31, vHALF = 1, 2, 3
KADDR = 8
VADDR = 16
KDMA = 20
VDMA, WDMA = 24, 25
LSUM = 26
LT = 28
TMP = 30
SA_, SB_ = 40, 72
PA_, PB_ = 104, 120
NEGM = 136
RING = 168
WADDR = 200
HOFF = 204
OOFF = 206
XT = 208
QA = 128
PF = 6

def mf(D, A, B, C):
    return f"v_mfma_f32_32x32x16_bf16 {D}, {A}, {B}, {C}"
def vr(b, n): return f"v[{b}:{b+n-1}]"
def ar(b, n): return f"a[{b}:{b+n-1}]"

def softmax_instrs(S, P, first_done=None):
    out = []
    for q in range(2):
        for pr in range(8):
            ta = TMP + (pr % 2) * 2; tb = ta + 1
            s = S + 16 * q + 2 * pr
            out.append((f"v_exp_f32 v{ta}, v{s}", 8))
            out.append((f"v_exp_f32 v{tb}, v{s+1}", 8))
            if pr == 0:
                out.append(("s_nop 0", 4))
                out.append((f"v_add_f32 v{LT+q}, v{ta}, v{tb}", 4))
            else:
                out.append((f"v_add_f32 v{LT+q}, v{LT+q}, v{ta}", 4))
                out.append((f"v_add_f32 v{LT+q}, v{LT+q}, v{tb}", 4))
            out.append((f"v_cvt_pk_bf16_f32 v{P+8*q+pr}, v{ta}, v{tb}", 4))
    return out

def rowmax(k, S, q, t, t2):
    b = S + 16 * q
    k.e(f"v_max3_f32 v{t}, v{b}, v{b+1}, v{b+2}")
    for i in range(3, 15, 2):
        k.e(f"v_max3_f32 v{t}, v{t}, v{b+i}, v{b+i+1}")
    k.e(f"v_max_f32 v{t}, v{t}, v{b+15}")
    k.e(f"v_mov_b32 v{t2}, v{t}")
    k.e("s_nop 1")
    k.e(f"v_permlane32_swap_b32 v{t2}, v{t}")
    k.e("s_nop 1")
    k.e(f"v_max_f32 v{t}, v{t}, v{t2}")

def rare_path(k, lab, ret, SX, SY, PX):
    k.label(lab)
    k.e("s_nop 15"); k.e("s_nop 15")
    for q in range(2):
        t, t2, f = XT, XT + 1, XT + 2
        rowmax(k, SX, q, t, t2)
        k.e(f"v_max_f32 v{t}, 0, v{t}")
        k.e(f"v_sub_f32 v{f}, 0, v{t}")
        k.e(f"v_exp_f32 v{f}, v{f}")
        k.e("s_nop 0")
        k.e(f"v_mul_f32 v{LSUM+q}, v{LSUM+q}, v{f}")
        for i in range(64):
            k.e(f"v_accvgpr_read_b32 v{t2}, a{64*q+i}")
            k.e(f"v_mul_f32 v{t2}, v{t2}, v{f}")
            k.e(f"v_accvgpr_write_b32 a{64*q+i}, v{t2}")
        for i in range(16):
            k.e(f"v_sub_f32 v{NEGM+16*q+i}, v{NEGM+16*q+i}, v{t}")
            k.e(f"v_sub_f32 v{SX+16*q+i}, v{SX+16*q+i}, v{t}")
            k.e(f"v_sub_f32 v{SY+16*q+i}, v{SY+16*q+i}, v{t}")
    for ins, _ in softmax_instrs(SX, PX):
        k.e(ins)
    k.e("s_nop 1")
    k.e(f"s_branch {ret}")

def gen_attn(dbg=False):
    k = Kern("attn_kernel", (256,1,1), (256,1,1), 147456, nvgpr=256, nagpr=256)
    k.e("s_cmp_ge_u32 s2, 256")
    k.e("s_cbranch_scc1 attn_done")
    k.srd(8, 'k', 32*2048*128*2); k.srd(12, 'v', 32*2048*128*2); k.srd(16, 'wq', 576*4096*2)
    k.srd(20, 'ws', 2048*576*2, L.H1); k.srd(24, 'ws', 2048*4096*2, L.O)
    k.e("s_and_b32 s3, s2, 31")
    k.e("s_lshr_b32 s4, s2, 5")
    k.e("v_lshrrev_b32 v4, 6, v0")
    k.e(f"v_and_b32 v{vLANE}, 63, v0")
    k.e("v_readfirstlane_b32 s5, v4")
    k.e(f"v_and_b32 v{vL31}, 31, v0")
    k.e(f"v_lshrrev_b32 v{vHALF}, 5, v{vLANE}")
    k.e(f"v_and_b32 v4, 15, v{vL31}")
    k.e(f"v_lshlrev_b32 v5, 8, v{vL31}")
    for ks in range(8):
        k.e(f"v_add_u32 v6, {2*ks}, v{vHALF}")
        k.e("v_xor_b32 v6, v6, v4")
        k.e(f"v_lshl_add_u32 v{KADDR+ks}, v6, 4, v5")
    k.e(f"v_bfe_u32 v4, v{vLANE}, 2, 2")
    k.e(f"v_and_b32 v5, 3, v{vLANE}")
    k.e(f"v_bfe_u32 v6, v{vLANE}, 4, 1")
    k.e("v_lshlrev_b32 v5, 3, v5")
    k.e("v_lshl_add_u32 v5, v6, 5, v5")
    k.e("v_lshl_add_u32 v5, v4, 8, v5")
    for db in range(4):
        k.e(f"v_xor_b32 v6, {db}, v4")
        k.e("v_lshl_add_u32 v6, v6, 6, v5")
        k.e(f"v_lshl_add_u32 v{WADDR+db}, v{vHALF}, 11, v6")
        k.e(f"v_lshl_add_u32 v{VADDR+db}, v{vHALF}, 10, v6")
        k.e(f"v_add_u32 v{VADDR+db}, 0x10000, v{VADDR+db}")
    k.e(f"v_lshrrev_b32 v4, 4, v{vLANE}")
    k.e(f"v_and_b32 v5, 15, v{vLANE}")
    for c in range(4):
        k.e(f"v_add_u32 v6, {4*c}, v4")
        k.e("v_xor_b32 v6, v6, v5")
        k.e("v_lshlrev_b32 v6, 4, v6")
        k.e(f"v_lshl_add_u32 v{KDMA+c}, v4, 8, v6")
    k.e("v_lshlrev_b32 v6, 2, v4")
    k.e("v_xor_b32 v6, v6, v5")
    k.e("v_lshlrev_b32 v6, 4, v6")
    k.e(f"v_lshl_add_u32 v{VDMA}, v4, 8, v6")
    k.e(f"v_lshl_add_u32 v{WDMA}, v4, 13, v6")
    k.e("s_movk_i32 s6, 1152")
    k.e(f"v_mul_lo_u32 v4, v{vL31}, s6")
    k.e(f"v_lshl_add_u32 v{HOFF}, v{vHALF}, 4, v4")
    k.e(f"v_add_u32 v{HOFF+1}, 36864, v{HOFF}")
    k.e(f"v_lshlrev_b32 v4, 13, v{vL31}")
    k.e(f"v_lshl_add_u32 v{OOFF}, v{vHALF}, 4, v4")
    k.e(f"v_add_u32 v{OOFF+1}, 0x40000, v{OOFF}")
    k.e("s_lshl_b32 s30, s5, 12")
    k.e("s_lshl_b32 s28, s3, 19")
    k.e("s_add_u32 s28, s28, s30")
    k.e("s_mov_b32 s29, s28")
    k.e(f"s_mov_b32 s32, 0x{THR:x}")
    k.e("s_lshl_b32 s33, s3, 8")
    k.e("s_mul_i32 s6, s5, 393216")
    k.e("s_add_u32 s33, s33, s6")
    k.e("s_mul_i32 s37, s5, 12288")
    k.e("s_lshl_b32 s6, s4, 8")
    k.e("s_lshl_b32 s7, s5, 6")
    k.e("s_add_u32 s6, s6, s7")
    k.e("s_mul_i32 s34, s6, 1152")
    k.e("s_lshl_b32 s35, s6, 13")
    k.e("s_lshl_b32 s7, s3, 8")
    k.e("s_add_u32 s35, s35, s7")
    k.srd_finish()
    vm = VM()
    def wq_group(g):
        for j in range(12):
            k.e(f"s_add_u32 m0, s37, {g*49152 + j*1024}")
            k.e(f"s_add_u32 s36, s33, {(48*g + j)*32768}")
            k.e(f"buffer_load_dwordx4 v{WDMA}, s[16:19], s36 offen lds")
            vm.issue(f"G{g}")
    def h_load(ks):
        for q in range(2):
            a = (ks % 16) * 8 + 4 * q
            k.e(f"buffer_load_dwordx4 a[{a}:{a+3}], v{HOFF+q}, s[20:23], s34 offen offset:{32*ks}")
            vm.issue(f"H{ks}")
    def kv_dma(which, slot, emit):
        out = []
        if which == 'K':
            out.append(f"s_add_u32 m0, s30, {slot*16384}\n    s_nop 0")
            for c in range(4):
                out.append(f"buffer_load_dwordx4 v{KDMA+c}, s[8:11], s28 offen offset:{1024*c} lds")
            out.append("s_add_u32 s28, s28, 16384")
        else:
            out.append(f"s_add_u32 m0, s30, {65536 + slot*16384}\n    s_nop 0")
            for c in range(4):
                out.append(f"buffer_load_dwordx4 v{VDMA}, s[12:15], s29 offen offset:{1024*c} lds")
            out.append("s_add_u32 s29, s29, 16384")
        if emit:
            for o in out:
                k.e(o)
                if o.startswith("buffer"): vm.issue(which)
        return out
    wq_group(0)
    for ks in range(4): h_load(ks)
    wq_group(1)
    for ks in range(4, 12): h_load(ks)
    wq_group(2)
    ACC = 40
    for g in range(3):
        k.e(f"s_waitcnt vmcnt({vm.wait_n(f'G{g}')})")
        k.e("s_barrier")
        if g == 1:
            for t in range(3): kv_dma('K', t, True)
        if g == 2:
            for t in range(2): kv_dma('V', t, True)
        frs = [(ks, db) for ks in range(12*g, 12*g+12) for db in range(4)]
        def rd(i):
            ks, db = frs[i]
            r = RING + 4 * (i % 8)
            off = (ks - 12*g) * 4096
            k.e(f"ds_read_b64_tr_b16 v[{r}:{r+1}], v{WADDR+db} offset:{off}")
            k.e(f"ds_read_b64_tr_b16 v[{r+2}:{r+3}], v{WADDR+db} offset:{off+1024}")
        for i in range(PF): rd(i)
        for i, (ks, db) in enumerate(frs):
            if db == 0:
                k.e(f"s_waitcnt vmcnt({vm.wait_n(f'H{ks}')})")
            n_after = 2 * (min(i + PF, len(frs)) - 1 - i)
            k.e(f"s_waitcnt lgkmcnt({min(n_after,15)})")
            r = RING + 4 * (i % 8)
            for q in range(2):
                a = (ks % 16) * 8 + 4 * q
                d = ACC + (q*4+db)*16
                c = "0" if ks == 0 else vr(d, 16)
                k.e(mf(vr(d, 16), vr(r, 4), ar(a, 4), c))
                if q == 0 and i + PF < len(frs): rd(i + PF)
            if db == 3 and ks + 12 < 36:
                h_load(ks + 12)
        if g < 2:
            for db in range(4):
                k.e(f"v_add_u32 v{WADDR+db}, 49152, v{WADDR+db}")
    k.e("s_nop 15")
    k.e(f"s_mov_b32 s6, 0x{QSCALE:x}")
    for q in range(2):
        for db in range(4):
            for t in range(2):
                b = ACC + (q*4+db)*16 + 8*t
                for j in range(8):
                    k.e(f"v_mul_f32 v{b+j}, s6, v{b+j}")
                for j in range(4):
                    k.e(f"v_cvt_pk_bf16_f32 v{XT+j}, v{b+2*j}, v{b+2*j+1}")
                k.e("s_nop 1")
                k.e(f"v_permlane32_swap_b32 v{XT}, v{XT+2}")
                k.e(f"v_permlane32_swap_b32 v{XT+1}, v{XT+3}")
                k.e("s_nop 1")
                for j in range(4):
                    k.e(f"v_accvgpr_write_b32 a{QA + (q*8 + 2*db + t)*4 + j}, v{XT+j}")
    for i in range(128):
        k.e(f"v_accvgpr_write_b32 a{i}, 0")
    k.e(f"v_mov_b32 v{LSUM}, 0"); k.e(f"v_mov_b32 v{LSUM+1}, 0")
    k.e("s_waitcnt vmcnt(0)")
    k.e("s_barrier")
    for ks in range(8):
        r = RING + 4 * ks
        k.e(f"ds_read_b128 v[{r}:{r+3}], v{KADDR+ks}")
    for ks in range(8):
        k.e(f"s_waitcnt lgkmcnt({7-ks})")
        r = RING + 4 * ks
        for q in range(2):
            d = SA_ + 16*q
            k.e(mf(vr(d, 16), vr(r, 4), ar(QA + (q*8+ks)*4, 4), "0" if ks == 0 else vr(d, 16)))
    k.e("s_nop 15")
    for q in range(2):
        rowmax(k, SA_, q, XT, XT+1)
        for i in range(16):
            k.e(f"v_sub_f32 v{NEGM+16*q+i}, 0, v{XT}")
            k.e(f"v_sub_f32 v{SA_+16*q+i}, v{SA_+16*q+i}, v{XT}")
    def frag_reads(it, f):
        sl = it % 4; sl1 = (it + 1) % 4
        r = RING + 4 * (f % 8)
        ph, j = f // 8, f % 8
        if ph == 0:
            return [f"ds_read_b128 v[{r}:{r+3}], v{KADDR+j} offset:{sl*16384 + 8192}"]
        if ph == 2:
            return [f"ds_read_b128 v[{r}:{r+3}], v{KADDR+j} offset:{sl1*16384}"]
        kk, db = j // 4, j % 4
        off = sl * 16384 + (8192 if ph == 3 else 0) + kk * 4096
        return [f"ds_read_b64_tr_b16 v[{r}:{r+1}], v{VADDR+db} offset:{off}",
                f"ds_read_b64_tr_b16 v[{r+2}:{r+3}], v{VADDR+db} offset:{off+2048}"]
    def nreads(f):
        return 1 if (f % 32) // 8 in (0, 2) else 2
    def mfma_of(t):
        f, q = t // 2, t % 2
        r = RING + 4 * (f % 8)
        ph, j = f // 8, f % 8
        if ph in (0, 2):
            S = SB_ if ph == 0 else SA_
            d = S + 16*q
            c = vr(NEGM + 16*q, 16) if j == 0 else vr(d, 16)
            return mf(vr(d, 16), vr(r, 4), ar(QA + (q*8+j)*4, 4), c)
        P = PA_ if ph == 1 else PB_
        kk, db = j // 4, j % 4
        o = (q*4+db)*16
        return mf(ar(o, 16), vr(r, 4), vr(P + 8*q + 4*kk, 4), ar(o, 16))
    smA = softmax_instrs(SA_, PA_)
    smB = softmax_instrs(SB_, PB_)
    winA = list(range(51, 64)) + list(range(0, 14))
    winB = list(range(19, 46))
    def distribute(ins, win):
        tot = sum(c for _, c in ins)
        res = {g: [] for g in win}
        acc = 0; i = 0
        for n, g in enumerate(win):
            target = tot * (n + 1) / len(win)
            while i < len(ins) and (acc + ins[i][1] / 2 <= target or n == len(win) - 1):
                res[g].append(ins[i][0]); acc += ins[i][1]; i += 1
        return res
    dA = distribute(smA, winA); dB = distribute(smB, winB)
    for g in range(51, 64):
        for ins in dA[g]: k.e(ins)
    for f in range(PF):
        for ins in frag_reads(0, f): k.e(ins)
    k.e("s_mov_b32 s31, 8")
    rares = []
    k.e(".p2align 6")
    k.label("attn_loop")
    for it in range(4):
        dmaK = kv_dma('K', (it + 3) % 4, False)
        dmaV = kv_dma('V', (it + 2) % 4, False)
        dma_at = {}
        seq = dmaK + dmaV
        slots = [1, 3, 5, 7, 9, 15, 17, 17, 47, 49, 49, 49]
        for s_, ins in zip(slots, seq):
            dma_at.setdefault(s_, []).append(ins)
        for t in range(64):
            f, q = t // 2, t % 2
            if t == 0:
                k.e("s_waitcnt vmcnt(8)")
                k.e("s_barrier")
            if q == 0:
                n = sum(nreads(f + x) for x in range(1, PF))
                k.e(f"s_waitcnt lgkmcnt({n})")
            k.e(mfma_of(t))
            if q == 0:
                f2 = f + PF
                for ins in frag_reads(it + f2 // 32, f2 % 32): k.e(ins)
            for ins in dma_at.get(t, []): k.e(ins)
            for ins in dA.get(t, []): k.e(ins)
            for ins in dB.get(t, []): k.e(ins)
            if t in (14, 46):
                lab = k.newlabel("rare"); ret = k.newlabel("ret")
                k.e(f"v_max_f32 v{TMP+4}, v{LT}, v{LT+1}")
                k.e(f"v_cmp_lt_f32 vcc, s32, v{TMP+4}")
                k.e(f"s_cbranch_vccnz {lab}")
                k.label(ret)
                k.e(f"v_add_f32 v{LSUM}, v{LSUM}, v{LT}")
                k.e(f"v_add_f32 v{LSUM+1}, v{LSUM+1}, v{LT+1}")
                if t == 14: rares.append((lab, ret, SA_, SB_, PA_))
                else: rares.append((lab, ret, SB_, SA_, PB_))
    k.e("s_sub_u32 s31, s31, 1")
    k.e("s_cmp_lg_u32 s31, 0")
    k.e("s_cbranch_scc1 attn_loop")
    k.e("s_nop 15")
    k.e("s_waitcnt vmcnt(0) lgkmcnt(0)")
    for q in range(2):
        l = LSUM + q
        k.e(f"v_mov_b32 v{XT}, v{l}")
        k.e("s_nop 1")
        k.e(f"v_permlane32_swap_b32 v{XT}, v{l}")
        k.e("s_nop 1")
        k.e(f"v_add_f32 v{l}, v{l}, v{XT}")
        k.e(f"v_rcp_f32 v{l}, v{l}")
        k.e("s_nop 0")
    n = 0
    for q in range(2):
        for db in range(4):
            for gp in range(2):
                T = XT + 12 * (n % 2); n += 1
                for j in range(8):
                    k.e(f"v_accvgpr_read_b32 v{T+4+j}, a{(q*4+db)*16 + 8*gp + j}")
                for j in range(8):
                    k.e(f"v_mul_f32 v{T+4+j}, v{T+4+j}, v{LSUM+q}")
                for j in range(4):
                    k.e(f"v_cvt_pk_bf16_f32 v{T+j}, v{T+4+2*j}, v{T+5+2*j}")
                k.e("s_nop 1")
                k.e(f"v_permlane32_swap_b32 v{T}, v{T+2}")
                k.e(f"v_permlane32_swap_b32 v{T+1}, v{T+3}")
                k.e(f"buffer_store_dwordx4 v[{T}:{T+3}], v{OOFF+q}, s[24:27], s35 offen offset:{64*db+32*gp}")
    k.label("attn_done")
    k.e("s_endpgm")
    for r in rares:
        rare_path(k, *r)
    return k
```

```python
import layout as L

KA = dict(x=0, k=8, v=16, wq=24, wo=32, bx=40, w1=48, w2=56, c=64, wmod=72, out=80, dbg=88, ws=96)

class Kern:
    def __init__(self, name, grid, block, lds, nvgpr=256, nagpr=0, nsgpr=102):
        self.name = name; self.grid = grid; self.block = block; self.lds = lds
        self.nvgpr = nvgpr; self.nagpr = nagpr; self.nsgpr = nsgpr
        self.lines = []
        self.uid = 0
    def e(self, s):
        self.lines.append("    " + s)
    def c(self, s):
        self.lines.append("    ; " + s)
    def label(self, l):
        self.lines.append(l + ":")
    def newlabel(self, p="L"):
        self.uid += 1
        return f"{self.name}_{p}{self.uid}"
    def srd(self, sd, karg, size, off=0):
        self.e(f"s_load_dwordx2 s[{sd}:{sd+1}], s[0:1], {KA[karg]}")
        self.pend = getattr(self, 'pend', []) + [(sd, size, off)]
    def srd_finish(self):
        self.e("s_waitcnt lgkmcnt(0)")
        for sd, size, off in self.pend:
            if off:
                self.e(f"s_add_u32 s{sd}, s{sd}, 0x{off:x}")
                self.e(f"s_addc_u32 s{sd+1}, s{sd+1}, 0")
            self.e(f"s_and_b32 s{sd+1}, s{sd+1}, 0xffff")
            self.e(f"s_mov_b32 s{sd+2}, 0x{size:x}")
            self.e(f"s_mov_b32 s{sd+3}, 0x00020000")
        self.pend = []
    def launch_line(self):
        g = self.grid; b = self.block
        return f"; @launch kernel={self.name} grid=({g[0]},{g[1]},{g[2]}) block=({b[0]},{b[1]},{b[2]}) lds={self.lds}"
    def text(self):
        acc = (self.nvgpr + 3) // 4 * 4
        nfv = acc + self.nagpr if self.nagpr else self.nvgpr
        head = [f".globl {self.name}", ".p2align 8", f".type {self.name},@function", f"{self.name}:"]
        return "\n".join(head + self.lines) + "\n"
    def desc(self):
        acc = (self.nvgpr + 3) // 4 * 4
        nfv = acc + self.nagpr if self.nagpr else self.nvgpr
        return f""".p2align 6
.amdhsa_kernel {self.name}
  .amdhsa_next_free_vgpr {nfv}
  .amdhsa_next_free_sgpr {self.nsgpr}
  .amdhsa_accum_offset {acc}
  .amdhsa_group_segment_fixed_size 0
  .amdhsa_kernarg_size 104
  .amdhsa_user_sgpr_count 2
  .amdhsa_user_sgpr_kernarg_segment_ptr 1
  .amdhsa_system_sgpr_workgroup_id_x 1
  .amdhsa_float_denorm_mode_32 3
  .amdhsa_float_denorm_mode_16_64 3
.end_amdhsa_kernel
"""

def wave_sum(k, v, s0):
    for m in ("quad_perm:[1,0,3,2]", "quad_perm:[2,3,0,1]", "row_half_mirror", "row_mirror"):
        k.e("s_nop 1")
        k.e(f"v_add_f32_dpp v{v}, v{v}, v{v} {m} row_mask:0xf bank_mask:0xf")
    k.e("s_nop 1")
    for i in range(4):
        k.e(f"v_readlane_b32 s{s0+i}, v{v}, {16*i}")
    k.e("s_nop 1")
    k.e(f"v_mov_b32 v{v}, s{s0}")
    for i in range(1, 4):
        k.e(f"v_add_f32 v{v}, s{s0+i}, v{v}")

def bf16r(k, vd, vs):
    k.e(f"v_cvt_pk_bf16_f32 v{vd}, v{vs}, v{vs}")
    k.e(f"v_lshlrev_b32 v{vd}, 16, v{vd}")

def bf16r2(k, va, vb, vt):
    k.e(f"v_cvt_pk_bf16_f32 v{vt}, v{va}, v{vb}")
    k.e(f"v_lshlrev_b32 v{va}, 16, v{vt}")
    k.e(f"v_and_b32 v{vb}, 0xffff0000, v{vt}")

def assemble(kerns, order, header):
    out = [header.rstrip("\n")]
    for kn in order:
        out.append(kn.launch_line())
    out.append('.amdgcn_target "amdgcn-amd-amdhsa--gfx950"')
    out.append(".text")
    seen = []
    for kn in kerns:
        out.append(kn.text())
    out.append('.section .rodata,"a"')
    for kn in kerns:
        out.append(kn.desc())
    return "\n".join(out)
```

```python
from gen_common import *
from gen_attn import VM, mf, vr, ar

NLOG2E = 0xbfb8aa3b
STAGE = 53248
PFD = 10
NR = 12

def gen_gemm(name, xk, xoff, xsize, ldx, wk, wsize, ldw, nstage, mode):
    k = Kern(name, (256,1,1), (256,1,1), 3*STAGE, nvgpr=256, nsgpr=64)
    ACC = 100; WR = 32; XR = 80
    XA = 4
    WA = 8
    XD = 10
    WD = 14
    OO = 24
    k.e("s_cmp_ge_u32 s2, 256")
    k.e(f"s_cbranch_scc1 {name}_done")
    k.srd(8, xk, xsize, xoff); k.srd(12, wk, wsize)
    if mode == 'part': k.srd(16, 'ws', 8*2048*576*4, L.PART)
    else: k.srd(16, 'ws', 2048*4608*2, L.U)
    k.e("v_lshrrev_b32 v4, 6, v0")
    k.e("v_and_b32 v1, 63, v0")
    k.e("v_readfirstlane_b32 s5, v4")
    k.e("v_and_b32 v2, 31, v0")
    k.e("v_lshrrev_b32 v3, 5, v1")
    k.e("s_and_b32 s6, s2, 7")
    k.e("s_lshr_b32 s7, s2, 3")
    if mode == 'part':
        k.e("s_and_b32 s3, s7, 15"); k.e("s_lshr_b32 s4, s7, 4")
        KR = nstage * 64
        k.e(f"s_mul_i32 s23, s6, {KR}")
    else:
        k.e("s_and_b32 s3, s6, 1"); k.e("s_lshl_b32 s3, s3, 3"); k.e("s_and_b32 s24, s7, 7"); k.e("s_add_u32 s3, s3, s24")
        k.e("s_lshr_b32 s4, s6, 1"); k.e("s_lshl_b32 s4, s4, 2"); k.e("s_lshr_b32 s24, s7, 3"); k.e("s_add_u32 s4, s4, s24")
        k.e("s_mov_b32 s23, 0")
    k.e("s_lshl_b32 s24, s3, 7"); k.e("s_lshl_b32 s25, s5, 5"); k.e("s_add_u32 s24, s24, s25")
    k.e(f"s_mul_i32 s20, s24, {ldx}"); k.e("s_lshl_b32 s25, s23, 1"); k.e("s_add_u32 s20, s20, s25")
    k.e("s_lshl_b32 s25, s5, 4"); k.e("s_add_u32 s25, s25, s23"); k.e(f"s_mul_i32 s21, s25, {ldw}")
    k.e("s_mul_i32 s25, s4, 576"); k.e("s_add_u32 s21, s21, s25")
    if mode == 'part':
        k.e("s_mul_i32 s22, s24, 2304"); k.e(f"s_mul_i32 s25, s6, {2048*2304}"); k.e("s_add_u32 s22, s22, s25")
        k.e("s_mul_i32 s25, s4, 1152"); k.e("s_add_u32 s22, s22, s25")
    else:
        k.e("s_mul_i32 s22, s24, 9216"); k.e("s_mul_i32 s25, s4, 576"); k.e("s_add_u32 s22, s22, s25")
    k.e("s_lshl_b32 s26, s5, 12")
    k.e("s_mul_i32 s27, s5, 9216"); k.e("s_add_u32 s27, s27, 16384")
    k.e("v_bfe_u32 v28, v2, 1, 3")
    k.e("v_lshlrev_b32 v29, 7, v2")
    k.e("v_add_u32 v29, s26, v29")
    for ks in range(4):
        k.e(f"v_add_u32 v30, {2*ks}, v3")
        k.e("v_xor_b32 v30, v30, v28")
        k.e(f"v_lshl_add_u32 v{XA+ks}, v30, 4, v29")
    k.e("v_bfe_u32 v28, v1, 2, 2")
    k.e("v_lshl_add_u32 v28, v3, 3, v28")
    k.e("v_mul_u32_u24 v28, 576, v28")
    k.e("v_bfe_u32 v29, v1, 4, 1")
    k.e("v_lshl_add_u32 v28, v29, 5, v28")
    k.e("v_and_b32 v29, 3, v1")
    k.e(f"v_lshl_add_u32 v{WA}, v29, 3, v28")
    k.e("v_lshrrev_b32 v28, 3, v1")
    k.e("v_and_b32 v29, 7, v1")
    k.e("v_lshrrev_b32 v30, 4, v1")
    k.e(f"s_mov_b32 s25, {ldx}")
    for c in range(4):
        k.e(f"v_add_u32 v31, {4*(c&1)}, v30")
        k.e("v_xor_b32 v31, v31, v29")
        k.e("v_lshlrev_b32 v31, 4, v31")
        k.e(f"v_add_u32 v{XD+c}, {8*c}, v28")
        k.e(f"v_mul_lo_u32 v{XD+c}, v{XD+c}, s25")
        k.e(f"v_add_u32 v{XD+c}, v{XD+c}, v31")
        if c: k.e(f"v_subrev_u32 v{XD+c}, {1024*c}, v{XD+c}")
    for P in range(576): assert (P * 1821) >> 16 == P // 36
    k.e(f"s_mov_b32 s25, {ldw}")
    for j in range(9):
        k.e(f"v_add_u32 v28, {64*j}, v1")
        k.e("v_mul_u32_u24 v29, 1821, v28")
        k.e("v_lshrrev_b32 v29, 16, v29")
        k.e("v_mul_u32_u24 v30, 36, v29")
        k.e("v_sub_u32 v28, v28, v30")
        k.e(f"v_mul_lo_u32 v{WD+j}, v29, s25")
        k.e(f"v_lshl_add_u32 v{WD+j}, v28, 4, v{WD+j}")
        if j % 4: k.e(f"v_subrev_u32 v{WD+j}, {1024*(j%4)}, v{WD+j}")
    if mode == 'part': k.e("v_mul_u32_u24 v28, 2304, v2")
    else: k.e("v_mul_u32_u24 v28, 9216, v2")
    k.e(f"v_lshl_add_u32 v{OO}, v3, 4, v28")
    k.srd_finish()
    vm = VM()
    def dma(s):
        b = (s % 3) * STAGE
        out = [f"s_add_u32 m0, s26, {b}\n    s_nop 0"]
        for c in range(4):
            out.append(f"buffer_load_dwordx4 v{XD+c}, s[8:11], s20 offen offset:{1024*c} lds")
        for j in range(9):
            if j % 4 == 0: out.append(f"s_add_u32 m0, s27, {b + 4096*(j//4)}\n    s_nop 0")
            out.append(f"buffer_load_dwordx4 v{WD+j}, s[12:15], s21 offen offset:{1024*(j%4)} lds")
        out.append("s_add_u32 s20, s20, 128")
        out.append(f"s_add_u32 s21, s21, {64*ldw}")
        return out
    def emit_vm(ins, tag):
        k.e(ins)
        if ins.startswith("buffer"): vm.issue(tag)
    for s in range(min(3, nstage)):
        for ins in dma(s): emit_vm(ins, f"S{s}")
    NM = nstage * 36
    BAR = 36 - PFD + 4
    def bar_gap(s):
        return -1 if s == 0 else (s-1)*36 + BAR - 1
    issue = {}
    for F in range(NM):
        s = F // 36
        g = max(F - PFD, bar_gap(s))
        issue.setdefault(g, []).append(('W', F))
    for s in range(nstage):
        for ks in range(4):
            F = s*36 + ks*9
            g = max(F - PFD - 2, bar_gap(s))
            issue.setdefault(g, []).insert(0, ('X', s*4+ks))
    dsq = []
    cur_stage_addr = [0]
    def do_reads(g):
        for kind, idx in issue.get(g, []):
            if kind == 'W':
                s, rem = idx // 36, idx % 36
                ks, nb = rem // 9, rem % 9
                set_stage(s)
                r = WR + 4 * (idx % NR)
                off = 16384 + nb*64 + ks*9216
                k.e(f"ds_read_b64_tr_b16 v[{r}:{r+1}], v{WA} offset:{off}")
                k.e(f"ds_read_b64_tr_b16 v[{r+2}:{r+3}], v{WA} offset:{off+2304}")
                dsq.append(('W', idx)); dsq.append(('W', idx))
            else:
                s, ks = idx // 4, idx % 4
                set_stage(s)
                r = XR + 4 * (idx % 4)
                k.e(f"ds_read_b128 v[{r}:{r+3}], v{XA+ks}")
                dsq.append(('X', idx))
    def set_stage(s):
        if cur_stage_addr[0] != s:
            d = ((s % 3) - (cur_stage_addr[0] % 3)) * STAGE
            for r in [XA, XA+1, XA+2, XA+3, WA]:
                if d > 0: k.e(f"v_add_u32 v{r}, {d}, v{r}")
                else: k.e(f"v_subrev_u32 v{r}, {-d}, v{r}")
            cur_stage_addr[0] = s
    def need(tags):
        idx = max(i for i, t in enumerate(dsq) if t in tags)
        return len(dsq) - 1 - idx
    k.e(f"s_waitcnt vmcnt({vm.wait_n('S0')})")
    k.e("s_barrier")
    do_reads(-1)
    pend_dma = []
    for F in range(NM):
        s, rem = F // 36, F % 36
        ks, nb = rem // 9, rem % 9
        n = need([('W', F), ('X', s*4+ks)])
        k.e(f"s_waitcnt lgkmcnt({min(n, 15)})")
        d = ACC + 16*nb
        k.e(mf(vr(d, 16), vr(WR + 4*(F % NR), 4), vr(XR + 4*((s*4+ks) % 4), 4), "0" if (s == 0 and ks == 0) else vr(d, 16)))
        if rem == BAR - 1 and s + 1 < nstage:
            k.e(f"s_waitcnt vmcnt({vm.wait_n(f'S{s+1}')}) lgkmcnt(0)")
            k.e("s_barrier")
            if s + 3 < nstage:
                pend_dma = [(i, f"S{s+3}") for i in dma(s + 3)]
        do_reads(F)
        for _ in range(2):
            if pend_dma:
                i, t = pend_dma.pop(0); emit_vm(i, t)
    k.e("s_nop 15")
    if mode == 'part':
        for nb in range(9):
            for g in range(4):
                r = ACC + 16*nb + 4*g
                k.e(f"buffer_store_dwordx4 v[{r}:{r+3}], v{OO}, s[16:19], s22 offen offset:{128*nb+32*g}")
    else:
        k.e(f"s_mov_b32 s25, 0x{NLOG2E:x}")
        n = 0
        for nb in range(9):
            for gp in range(2):
                b = ACC + 16*nb + 8*gp
                T = WR + 16 * (n % 3); n += 1
                for j in range(4):
                    bf16r2(k, b+2*j, b+2*j+1, T+j)
                for j in range(8):
                    k.e(f"v_mul_f32 v{T+4+j}, s25, v{b+j}")
                for j in range(8):
                    k.e(f"v_exp_f32 v{T+4+j}, v{T+4+j}")
                for j in range(8):
                    k.e(f"v_add_f32 v{T+4+j}, 1.0, v{T+4+j}")
                for j in range(8):
                    k.e(f"v_rcp_f32 v{T+4+j}, v{T+4+j}")
                for j in range(8):
                    k.e(f"v_mul_f32 v{b+j}, v{b+j}, v{T+4+j}")
                for j in range(4):
                    k.e(f"v_cvt_pk_bf16_f32 v{T+j}, v{b+2*j}, v{b+2*j+1}")
                k.e("s_nop 1")
                k.e(f"v_permlane32_swap_b32 v{T}, v{T+2}")
                k.e(f"v_permlane32_swap_b32 v{T+1}, v{T+3}")
                k.e(f"buffer_store_dwordx4 v[{T}:{T+3}], v{OO}, s[16:19], s22 offen offset:{64*nb+32*gp}")
    k.label(f"{name}_done")
    k.e("s_endpgm")
    return k

def gen_gemms():
    return {
        'oproj': gen_gemm("oproj_kernel", 'ws', L.O, 2048*4096*2, 8192, 'wo', 4096*576*2, 1152, 8, 'part'),
        'ffn1': gen_gemm("ffn1_kernel", 'ws', L.H2, 2048*576*2, 1152, 'w1', 576*4608*2, 9216, 9, 'silu'),
        'ffn2': gen_gemm("ffn2_kernel", 'ws', L.U, 2048*4608*2, 9216, 'w2', 4608*576*2, 1152, 9, 'part'),
    }
```

```python
from gen_common import *

LOG2E = 0x3fb8aa3b
NLOG2E = 0xbfb8aa3b

def gen_mod():
    k = Kern("mod_kernel", (108,1,1), (1024,1,1), 8192+1024, nvgpr=40, nsgpr=40)
    done = "mod_done"
    k.e("s_cmp_ge_u32 s2, 108")
    k.e(f"s_cbranch_scc1 {done}")
    k.srd(8, 'c', 576*2); k.srd(12, 'wmod', 576*3456*2); k.srd(16, 'ws', 3456*4, L.MOD)
    k.e("v_and_b32 v1, 15, v0")
    k.e("v_lshrrev_b32 v2, 4, v0")
    k.e("v_mul_u32_u24 v3, 9, v2")
    k.e("v_lshlrev_b32 v4, 1, v3")
    k.e("s_mov_b32 s20, 6912")
    k.e("v_mul_lo_u32 v5, v3, s20")
    k.e("s_lshl_b32 s3, s2, 6")
    k.e("v_lshl_add_u32 v5, v1, 2, v5")
    k.e("v_add_u32 v5, s3, v5")
    for i in range(9):
        k.e(f"s_mov_b32 s{21+i}, {6912*i}")
    k.srd_finish()
    for i in range(9):
        k.e(f"buffer_load_ushort v{10+i}, v4, s[8:11], 0 offen offset:{2*i}")
    for i in range(9):
        k.e(f"buffer_load_dword v{20+i}, v5, s[12:15], s{21+i} offen")
    k.e("s_waitcnt vmcnt(9)")
    k.e(f"s_mov_b32 s30, 0x{NLOG2E:x}")
    for i in range(9):
        k.e(f"v_lshlrev_b32 v{10+i}, 16, v{10+i}")
        k.e(f"v_mul_f32 v30, s30, v{10+i}")
        k.e("v_exp_f32 v30, v30")
        k.e("s_nop 0")
        k.e("v_add_f32 v30, 1.0, v30")
        k.e("v_rcp_f32 v30, v30")
        k.e("s_nop 0")
        k.e(f"v_mul_f32 v{10+i}, v{10+i}, v30")
        bf16r(k, 10+i, 10+i)
    k.e("v_mov_b32 v32, 0"); k.e("v_mov_b32 v33, 0")
    k.e("s_waitcnt vmcnt(0)")
    for i in range(9):
        k.e(f"v_lshlrev_b32 v34, 16, v{20+i}")
        k.e(f"v_and_b32 v35, 0xffff0000, v{20+i}")
        k.e(f"v_fmac_f32 v32, v{10+i}, v34")
        k.e(f"v_fmac_f32 v33, v{10+i}, v35")
    k.e("v_lshlrev_b32 v6, 7, v2")
    k.e("v_lshl_add_u32 v6, v1, 3, v6")
    k.e("ds_write_b64 v6, v[32:33]")
    k.e("s_waitcnt lgkmcnt(0)")
    k.e("s_barrier")
    k.e("v_cmp_gt_u32 vcc, 256, v0")
    k.e("s_and_saveexec_b64 s[32:33], vcc")
    k.e("s_cbranch_execz mod_skip1")
    k.e("v_and_b32 v7, 31, v0")
    k.e("v_lshrrev_b32 v8, 5, v0")
    k.e("v_lshlrev_b32 v9, 10, v8")
    k.e("v_lshl_add_u32 v9, v7, 2, v9")
    for i in range(8):
        k.e(f"ds_read_b32 v{20+i}, v9 offset:{128*i}")
    k.e("s_waitcnt lgkmcnt(0)")
    for i in range(1, 8):
        k.e(f"v_add_f32 v20, v20, v{20+i}")
    k.e("v_lshlrev_b32 v9, 2, v0")
    k.e("ds_write_b32 v9, v20 offset:8192")
    k.e("s_waitcnt lgkmcnt(0)")
    k.label("mod_skip1")
    k.e("s_mov_b64 exec, s[32:33]")
    k.e("s_barrier")
    k.e("v_cmp_gt_u32 vcc, 32, v0")
    k.e("s_and_saveexec_b64 s[32:33], vcc")
    k.e(f"s_cbranch_execz {done}")
    k.e("v_lshlrev_b32 v9, 2, v0")
    for i in range(8):
        k.e(f"ds_read_b32 v{20+i}, v9 offset:{8192+128*i}")
    k.e("s_waitcnt lgkmcnt(0)")
    for i in range(1, 8):
        k.e(f"v_add_f32 v20, v20, v{20+i}")
    bf16r(k, 20, 20)
    k.e("s_lshl_b32 s3, s2, 7")
    k.e("v_add_u32 v9, s3, v9")
    k.e("buffer_store_dword v20, v9, s[16:19], 0 offen")
    k.label(done)
    k.e("s_endpgm")
    return k

def ln_body(k, X, CA, SA, OUT, T, smask):
    t0, t1, t2, t3, t4, t5 = T, T+1, T+2, T+3, T+4, T+5
    k.e(f"v_add_f32 v{t0}, v{X}, v{X+1}")
    for i in range(2, 10):
        k.e(f"v_add_f32 v{t0}, v{t0}, v{X+i}")
    wave_sum(k, t0, 40)
    k.e("s_mov_b32 s44, 0x3ae38e39")
    k.e(f"v_mul_f32 v{t0}, s44, v{t0}")
    k.e(f"v_mov_b32 v{t1}, 0")
    for i in range(8):
        k.e(f"v_sub_f32 v{t2}, v{X+i}, v{t0}")
        k.e(f"v_fmac_f32 v{t1}, v{t2}, v{t2}")
    k.e(f"s_mov_b64 s[46:47], exec")
    k.e(f"s_mov_b64 exec, s[{smask}:{smask+1}]")
    for i in range(8, 10):
        k.e(f"v_sub_f32 v{t2}, v{X+i}, v{t0}")
        k.e(f"v_fmac_f32 v{t1}, v{t2}, v{t2}")
    k.e(f"s_mov_b64 exec, s[46:47]")
    wave_sum(k, t1, 40)
    k.e(f"v_mul_f32 v{t1}, s44, v{t1}")
    bf16r2(k, t0, t1, t2)
    k.e("s_mov_b32 s45, 0x3727c5ac")
    k.e(f"v_add_f32 v{t1}, s45, v{t1}")
    bf16r(k, t1, t1)
    k.e(f"v_sqrt_f32 v{t1}, v{t1}")
    k.e("s_nop 0")
    bf16r(k, t1, t1)
    k.e(f"v_rcp_f32 v{t2}, v{t1}")
    k.e("s_nop 0")
    for j in range(5):
        a, b = X+2*j, X+2*j+1
        k.e(f"v_sub_f32 v{a}, v{a}, v{t0}")
        k.e(f"v_sub_f32 v{b}, v{b}, v{t0}")
        bf16r2(k, a, b, t3)
        for r in (a, b):
            k.e(f"v_mul_f32 v{t4}, v{r}, v{t2}")
            k.e(f"v_fma_f32 v{t5}, -v{t4}, v{t1}, v{r}")
            k.e(f"v_fma_f32 v{r}, v{t5}, v{t2}, v{t4}")
        bf16r2(k, a, b, t3)
        ca, cb = CA+2*j, CA+2*j+1
        k.e(f"v_add_f32 v{ca}, 1.0, v{ca}")
        k.e(f"v_add_f32 v{cb}, 1.0, v{cb}")
        bf16r2(k, ca, cb, t3)
        k.e(f"v_mul_f32 v{a}, v{a}, v{ca}")
        k.e(f"v_mul_f32 v{b}, v{b}, v{cb}")
        bf16r2(k, a, b, t3)
        k.e(f"v_add_f32 v{a}, v{a}, v{SA+2*j}")
        k.e(f"v_add_f32 v{b}, v{b}, v{SA+2*j+1}")
        k.e(f"v_cvt_pk_bf16_f32 v{OUT+j}, v{a}, v{b}")

def gen_ln1():
    k = Kern("ln1_kernel", (512,1,1), (256,1,1), 0, nvgpr=64, nsgpr=64)
    k.e("s_cmp_ge_u32 s2, 512")
    k.e("s_cbranch_scc1 ln1_done")
    k.srd(8, 'x', 2048*576*2); k.srd(12, 'ws', 3456*4, L.MOD); k.srd(16, 'ws', 2048*576*2, L.H1)
    k.e("v_and_b32 v1, 63, v0")
    k.e("v_lshrrev_b32 v2, 6, v0")
    k.e("s_lshl_b32 s3, s2, 2")
    k.e("v_add_u32 v2, s3, v2")
    k.e("s_movk_i32 s4, 1152")
    k.e("v_mul_lo_u32 v2, v2, s4")
    k.e("v_lshl_add_u32 v2, v1, 2, v2")
    k.e("v_lshlrev_b32 v3, 3, v1")
    k.e("v_cmp_gt_u32 s[20:21], 32, v1")
    for i in range(10):
        k.e(f"v_mov_b32 v{10+i}, 0")
    k.e("v_mov_b32 v8, 0")
    k.e("s_movk_i32 s5, 2304")
    k.srd_finish()
    for j in range(4):
        k.e(f"buffer_load_dword v{4+j}, v2, s[8:11], 0 offen offset:{256*j}")
    for j in range(4):
        k.e(f"buffer_load_dwordx2 v[{20+2*j}:{21+2*j}], v3, s[12:15], s5 offen offset:{512*j}")
        k.e(f"buffer_load_dwordx2 v[{30+2*j}:{31+2*j}], v3, s[12:15], 0 offen offset:{512*j}")
    k.e("s_mov_b64 s[22:23], exec")
    k.e("s_mov_b64 exec, s[20:21]")
    k.e("buffer_load_dword v8, v2, s[8:11], 0 offen offset:1024")
    k.e(f"buffer_load_dwordx2 v[28:29], v3, s[12:15], s5 offen offset:2048")
    k.e(f"buffer_load_dwordx2 v[38:39], v3, s[12:15], 0 offen offset:2048")
    k.e("s_mov_b64 exec, s[22:23]")
    k.e("s_waitcnt vmcnt(0)")
    for j in range(5):
        k.e(f"v_lshlrev_b32 v{10+2*j}, 16, v{4+j}")
        k.e(f"v_and_b32 v{11+2*j}, 0xffff0000, v{4+j}")
    ln_body(k, 10, 20, 30, 40, 48, 20)
    for j in range(4):
        k.e(f"buffer_store_dword v{40+j}, v2, s[16:19], 0 offen offset:{256*j}")
    k.e("s_mov_b64 exec, s[20:21]")
    k.e("buffer_store_dword v44, v2, s[16:19], 0 offen offset:1024")
    k.label("ln1_done")
    k.e("s_endpgm")
    return k

def gen_ln2(NS):
    k = Kern("ln2_kernel", (512,1,1), (256,1,1), 0, nvgpr=40+10*NS+24, nsgpr=64)
    k.e("s_cmp_ge_u32 s2, 512")
    k.e("s_cbranch_scc1 ln2_done")
    k.srd(8, 'x', 2048*576*2); k.srd(12, 'ws', 3456*4, L.MOD); k.srd(16, 'ws', 2048*576*2, L.H2)
    k.srd(24, 'ws', 2048*576*2, L.X1); k.srd(28, 'ws', NS*2048*576*4, L.PART)
    k.e("v_and_b32 v1, 63, v0")
    k.e("v_lshrrev_b32 v2, 6, v0")
    k.e("s_lshl_b32 s3, s2, 2")
    k.e("v_add_u32 v2, s3, v2")
    k.e("s_movk_i32 s4, 1152")
    k.e("v_mul_lo_u32 v2, v2, s4")
    k.e("v_lshlrev_b32 v3, 3, v1")
    k.e("v_lshl_add_u32 v9, v2, 1, v3")
    k.e("v_lshl_add_u32 v2, v1, 2, v2")
    k.e("v_cmp_gt_u32 s[20:21], 32, v1")
    P = 64
    GA = 40
    k.e("v_mov_b32 v8, 0")
    for s in range(NS):
        k.e(f"v_mov_b32 v{P+10*s+8}, 0"); k.e(f"v_mov_b32 v{P+10*s+9}, 0")
        k.e(f"s_mov_b32 s{48+s}, {s*2048*576*4}")
    k.e(f"v_mov_b32 v{GA+8}, 0"); k.e(f"v_mov_b32 v{GA+9}, 0")
    k.e(f"s_movk_i32 s5, {3*2304}"); k.e(f"s_movk_i32 s6, {4*2304}"); k.e(f"s_movk_i32 s7, {2*2304}")
    k.srd_finish()
    for s in range(NS):
        for j in range(4):
            k.e(f"buffer_load_dwordx2 v[{P+10*s+2*j}:{P+10*s+2*j+1}], v9, s[28:31], s{48+s} offen offset:{512*j}")
    for j in range(4):
        k.e(f"buffer_load_dword v{4+j}, v2, s[8:11], 0 offen offset:{256*j}")
    for j in range(4):
        k.e(f"buffer_load_dwordx2 v[{GA+2*j}:{GA+2*j+1}], v3, s[12:15], s7 offen offset:{512*j}")
    for j in range(4):
        k.e(f"buffer_load_dwordx2 v[{20+2*j}:{21+2*j}], v3, s[12:15], s6 offen offset:{512*j}")
        k.e(f"buffer_load_dwordx2 v[{30+2*j}:{31+2*j}], v3, s[12:15], s5 offen offset:{512*j}")
    k.e("s_mov_b64 s[22:23], exec")
    k.e("s_mov_b64 exec, s[20:21]")
    for s in range(NS):
        k.e(f"buffer_load_dwordx2 v[{P+10*s+8}:{P+10*s+9}], v9, s[28:31], s{48+s} offen offset:2048")
    k.e("buffer_load_dword v8, v2, s[8:11], 0 offen offset:1024")
    k.e(f"buffer_load_dwordx2 v[{GA+8}:{GA+9}], v3, s[12:15], s7 offen offset:2048")
    k.e(f"buffer_load_dwordx2 v[28:29], v3, s[12:15], s6 offen offset:2048")
    k.e(f"buffer_load_dwordx2 v[38:39], v3, s[12:15], s5 offen offset:2048")
    k.e("s_mov_b64 exec, s[22:23]")
    k.e("s_waitcnt vmcnt(0)")
    for i in range(10):
        for s in range(1, NS):
            k.e(f"v_add_f32 v{P+i}, v{P+i}, v{P+10*s+i}")
    for j in range(5):
        a, b = P+2*j, P+2*j+1
        bf16r2(k, a, b, 50)
        k.e(f"v_mul_f32 v{a}, v{a}, v{GA+2*j}")
        k.e(f"v_mul_f32 v{b}, v{b}, v{GA+2*j+1}")
        bf16r2(k, a, b, 50)
        k.e(f"v_lshlrev_b32 v{10+2*j}, 16, v{4+j}")
        k.e(f"v_and_b32 v{11+2*j}, 0xffff0000, v{4+j}")
        k.e(f"v_add_f32 v{10+2*j}, v{10+2*j}, v{a}")
        k.e(f"v_add_f32 v{11+2*j}, v{11+2*j}, v{b}")
        k.e(f"v_cvt_pk_bf16_f32 v{4+j}, v{10+2*j}, v{11+2*j}")
        k.e(f"v_lshlrev_b32 v{10+2*j}, 16, v{4+j}")
        k.e(f"v_and_b32 v{11+2*j}, 0xffff0000, v{4+j}")
    for j in range(4):
        k.e(f"buffer_store_dword v{4+j}, v2, s[24:27], 0 offen offset:{256*j}")
    k.e("s_mov_b64 exec, s[20:21]")
    k.e("buffer_store_dword v8, v2, s[24:27], 0 offen offset:1024")
    k.e("s_mov_b64 exec, s[22:23]")
    ln_body(k, 10, 20, 30, 40, 52, 20)
    for j in range(4):
        k.e(f"buffer_store_dword v{40+j}, v2, s[16:19], 0 offen offset:{256*j}")
    k.e("s_mov_b64 exec, s[20:21]")
    k.e("buffer_store_dword v44, v2, s[16:19], 0 offen offset:1024")
    k.label("ln2_done")
    k.e("s_endpgm")
    return k

def gen_final(NS):
    k = Kern("final_kernel", (1152,1,1), (256,1,1), 0, nvgpr=16+4*NS+16, nsgpr=64)
    k.e("s_cmp_ge_u32 s2, 1152")
    k.e("s_cbranch_scc1 final_done")
    k.srd(8, 'ws', 2048*576*2, L.X1); k.srd(12, 'ws', 3456*4, L.MOD); k.srd(16, 'out', 2048*576*2)
    k.srd(28, 'ws', NS*2048*576*4, L.PART)
    k.e("s_lshl_b32 s3, s2, 8")
    k.e("v_add_u32 v1, s3, v0")
    k.e("s_mov_b32 s4, 0x1c71c72")
    k.e("v_mul_hi_u32 v2, v1, s4")
    k.e("s_movk_i32 s5, 144")
    k.e("v_mul_lo_u32 v2, v2, s5")
    k.e("v_sub_u32 v2, v1, v2")
    k.e("v_lshlrev_b32 v2, 4, v2")
    k.e("v_lshlrev_b32 v3, 4, v1")
    k.e("v_lshlrev_b32 v4, 3, v1")
    for s in range(NS):
        k.e(f"s_mov_b32 s{48+s}, {s*2048*576*4}")
    k.e(f"s_movk_i32 s6, {5*576*4}")
    k.srd_finish()
    P = 16
    for s in range(NS):
        k.e(f"buffer_load_dwordx4 v[{P+4*s}:{P+4*s+3}], v3, s[28:31], s{48+s} offen")
    k.e("buffer_load_dwordx2 v[6:7], v4, s[8:11], 0 offen")
    k.e("buffer_load_dwordx4 v[8:11], v2, s[12:15], s6 offen")
    k.e("s_waitcnt vmcnt(0)")
    for i in range(4):
        for s in range(1, NS):
            k.e(f"v_add_f32 v{P+i}, v{P+i}, v{P+4*s+i}")
    T = P + 4*NS
    for j in range(2):
        a, b = P+2*j, P+2*j+1
        bf16r2(k, a, b, T)
        k.e(f"v_mul_f32 v{a}, v{a}, v{8+2*j}")
        k.e(f"v_mul_f32 v{b}, v{b}, v{9+2*j}")
        bf16r2(k, a, b, T)
        k.e(f"v_lshlrev_b32 v{T+1}, 16, v{6+j}")
        k.e(f"v_and_b32 v{T+2}, 0xffff0000, v{6+j}")
        k.e(f"v_add_f32 v{a}, v{a}, v{T+1}")
        k.e(f"v_add_f32 v{b}, v{b}, v{T+2}")
        k.e(f"v_cvt_pk_bf16_f32 v{12+j}, v{a}, v{b}")
    k.e("buffer_store_dwordx2 v[12:13], v4, s[16:19], 0 offen")
    k.label("final_done")
    k.e("s_endpgm")
    return k
```

```python
import sys
from gen_common import *
from gen_small import *
from gen_attn import *
HEADER = open("adaLN_cond__mha_block_cached__dense_activation_silu__prompt.s.ref").read().split("; Override launch")[0]
def main():
    which = sys.argv[2] if len(sys.argv) > 2 else "all"
    import os
    ks = [gen_mod(), gen_ln1(), gen_attn(dbg=os.environ.get('DBG','0')=='1')]
    if which == "all":
        from gen_gemm import gen_gemms
        g = gen_gemms()
        ks += [g['oproj'], gen_ln2(4), g['ffn1'], g['ffn2'], gen_final(4)]
    txt = assemble(ks, ks, HEADER)
    open(sys.argv[1], "w").write(txt)
main()
```

```python
from gen_common import *

class VM:
    def __init__(self): self.q = []
    def issue(self, tag): self.q.append(tag)
    def wait_n(self, tag):
        idx = max(i for i, t in enumerate(self.q) if t == tag)
        return len(self.q) - 1 - idx

QSCALE = 0x3e0293ee
THR = 0x4b800000

vLANE, vL31, vHALF = 1, 2, 3
KADDR = 8
VADDR = 16
KDMA = 20
VDMA, WDMA = 24, 25
LSUM = 26
LT = 28
TMP = 30
SA_, SB_ = 40, 72
PA_, PB_ = 104, 120
NEGM = 136
RING = 168
WADDR = 200
HDMA = 204
WQD = 232
HADDR = 236
HR = 240
XT = 208
QA = 128
PF = 6

def mf(D, A, B, C):
    return f"v_mfma_f32_32x32x16_bf16 {D}, {A}, {B}, {C}"
def vr(b, n): return f"v[{b}:{b+n-1}]"
def ar(b, n): return f"a[{b}:{b+n-1}]"

def softmax_instrs(S, P, first_done=None):
    out = []
    for q in range(2):
        for pr in range(8):
            ta = TMP + (pr % 2) * 2; tb = ta + 1
            s = S + 16 * q + 2 * pr
            out.append((f"v_exp_f32 v{ta}, v{s}", 8))
            out.append((f"v_exp_f32 v{tb}, v{s+1}", 8))
            if pr == 0:
                out.append(("s_nop 0", 4))
                out.append((f"v_add_f32 v{LT+q}, v{ta}, v{tb}", 4))
            else:
                out.append((f"v_add_f32 v{LT+q}, v{LT+q}, v{ta}", 4))
                out.append((f"v_add_f32 v{LT+q}, v{LT+q}, v{tb}", 4))
            out.append((f"v_cvt_pk_bf16_f32 v{P+8*q+pr}, v{ta}, v{tb}", 4))
    return out

def rowmax(k, S, q, t, t2):
    b = S + 16 * q
    k.e(f"v_max3_f32 v{t}, v{b}, v{b+1}, v{b+2}")
    for i in range(3, 15, 2):
        k.e(f"v_max3_f32 v{t}, v{t}, v{b+i}, v{b+i+1}")
    k.e(f"v_max_f32 v{t}, v{t}, v{b+15}")
    k.e(f"v_mov_b32 v{t2}, v{t}")
    k.e("s_nop 1")
    k.e(f"v_permlane32_swap_b32 v{t2}, v{t}")
    k.e("s_nop 1")
    k.e(f"v_max_f32 v{t}, v{t}, v{t2}")

def rare_path(k, lab, ret, SX, SY, PX):
    k.label(lab)
    k.e("s_nop 15"); k.e("s_nop 15")
    for q in range(2):
        t, t2, f = XT, XT + 1, XT + 2
        rowmax(k, SX, q, t, t2)
        k.e(f"v_max_f32 v{t}, 0, v{t}")
        k.e(f"v_sub_f32 v{f}, 0, v{t}")
        k.e(f"v_exp_f32 v{f}, v{f}")
        k.e("s_nop 0")
        k.e(f"v_mul_f32 v{LSUM+q}, v{LSUM+q}, v{f}")
        for i in range(64):
            k.e(f"v_accvgpr_read_b32 v{t2}, a{64*q+i}")
            k.e(f"v_mul_f32 v{t2}, v{t2}, v{f}")
            k.e(f"v_accvgpr_write_b32 a{64*q+i}, v{t2}")
        for i in range(16):
            k.e(f"v_sub_f32 v{NEGM+16*q+i}, v{NEGM+16*q+i}, v{t}")
            k.e(f"v_sub_f32 v{SX+16*q+i}, v{SX+16*q+i}, v{t}")
            k.e(f"v_sub_f32 v{SY+16*q+i}, v{SY+16*q+i}, v{t}")
    for ins, _ in softmax_instrs(SX, PX):
        k.e(ins)
    k.e("s_nop 1")
    k.e(f"s_branch {ret}")

def gen_attn(dbg=False):
    k = Kern("attn_kernel", (256,1,1), (256,1,1), 147456, nvgpr=256, nagpr=256)
    k.e("s_cmp_ge_u32 s2, 256")
    k.e("s_cbranch_scc1 attn_done")
    k.srd(8, 'k', 32*2048*128*2); k.srd(12, 'v', 32*2048*128*2); k.srd(16, 'wq', 576*4096*2)
    k.srd(20, 'ws', 2048*576*2, L.H1); k.srd(24, 'ws', 2048*4096*2, L.O)
    k.e("s_and_b32 s3, s2, 31")
    k.e("s_lshr_b32 s4, s2, 5")
    k.e("v_lshrrev_b32 v4, 6, v0")
    k.e(f"v_and_b32 v{vLANE}, 63, v0")
    k.e("v_readfirstlane_b32 s5, v4")
    k.e(f"v_and_b32 v{vL31}, 31, v0")
    k.e(f"v_lshrrev_b32 v{vHALF}, 5, v{vLANE}")
    k.e(f"v_and_b32 v4, 15, v{vL31}")
    k.e(f"v_lshlrev_b32 v5, 8, v{vL31}")
    for ks in range(8):
        k.e(f"v_add_u32 v6, {2*ks}, v{vHALF}")
        k.e("v_xor_b32 v6, v6, v4")
        k.e(f"v_lshl_add_u32 v{KADDR+ks}, v6, 4, v5")
    k.e(f"v_bfe_u32 v4, v{vLANE}, 2, 2")
    k.e(f"v_and_b32 v5, 3, v{vLANE}")
    k.e(f"v_bfe_u32 v6, v{vLANE}, 4, 1")
    k.e("v_lshlrev_b32 v5, 3, v5")
    k.e("v_lshl_add_u32 v5, v6, 5, v5")
    k.e("v_lshl_add_u32 v5, v4, 8, v5")
    for db in range(4):
        k.e(f"v_xor_b32 v6, {db}, v4")
        k.e("v_lshl_add_u32 v6, v6, 6, v5")
        k.e(f"v_lshl_add_u32 v{WADDR+db}, v{vHALF}, 11, v6")
        k.e(f"v_lshl_add_u32 v{VADDR+db}, v{vHALF}, 10, v6")
        k.e(f"v_add_u32 v{VADDR+db}, 0x10000, v{VADDR+db}")
    k.e(f"v_lshrrev_b32 v4, 4, v{vLANE}")
    k.e(f"v_and_b32 v5, 15, v{vLANE}")
    for c in range(4):
        k.e(f"v_add_u32 v6, {4*c}, v4")
        k.e("v_xor_b32 v6, v6, v5")
        k.e("v_lshlrev_b32 v6, 4, v6")
        k.e(f"v_lshl_add_u32 v{KDMA+c}, v4, 8, v6")
    k.e("v_lshlrev_b32 v6, 2, v4")
    k.e("v_xor_b32 v6, v6, v5")
    k.e("v_lshlrev_b32 v6, 4, v6")
    k.e(f"v_lshl_add_u32 v{VDMA}, v4, 8, v6")
    k.e(f"v_lshl_add_u32 v{WDMA}, v4, 13, v6")
    k.e(f"v_lshrrev_b32 v4, 3, v{vLANE}")
    k.e(f"v_and_b32 v5, 7, v{vLANE}")
    k.e(f"v_lshrrev_b32 v6, 4, v{vLANE}")
    k.e("s_movk_i32 s6, 1152")
    for c in range(4):
        k.e(f"v_add_u32 v7, {4*(c&1)}, v6")
        k.e("v_xor_b32 v7, v7, v5")
        k.e("v_lshlrev_b32 v7, 4, v7")
        k.e(f"v_add_u32 v{HDMA+c}, {8*c}, v4")
        k.e(f"v_mul_lo_u32 v{HDMA+c}, v{HDMA+c}, s6")
        k.e(f"v_add_u32 v{HDMA+c}, v{HDMA+c}, v7")
        if c: k.e(f"v_subrev_u32 v{HDMA+c}, {1024*c}, v{HDMA+c}")
    for c in range(4):
        k.e(f"v_add_u32 v{WQD+c}, {4*c*8192 - 1024*c}, v{WDMA}")
    k.e(f"v_bfe_u32 v4, v{vL31}, 1, 3")
    k.e(f"v_lshlrev_b32 v5, 7, v{vL31}")
    k.e("s_lshl_b32 s6, s5, 13")
    k.e("v_add_u32 v5, s6, v5")
    for ks in range(4):
        k.e(f"v_add_u32 v6, {2*ks}, v{vHALF}")
        k.e("v_xor_b32 v6, v6, v4")
        k.e(f"v_lshl_add_u32 v{HADDR+ks}, v6, 4, v5")
    for db in range(4):
        k.e(f"v_add_u32 v{WADDR+db}, 32768, v{WADDR+db}")
    k.e("s_lshl_b32 s30, s5, 12")
    k.e("s_lshl_b32 s28, s3, 19")
    k.e("s_add_u32 s28, s28, s30")
    k.e("s_mov_b32 s29, s28")
    k.e(f"s_mov_b32 s32, 0x{THR:x}")
    k.e("s_lshl_b32 s33, s3, 8")
    k.e("s_lshl_b32 s6, s5, 17")
    k.e("s_add_u32 s33, s33, s6")
    k.e("s_lshl_b32 s37, s5, 13")
    k.e("s_lshl_b32 s6, s4, 8")
    k.e("s_lshl_b32 s7, s5, 6")
    k.e("s_add_u32 s6, s6, s7")
    k.e("s_mul_i32 s34, s6, 1152")
    k.e("s_lshl_b32 s35, s6, 13")
    k.e("s_lshl_b32 s7, s3, 8")
    k.e("s_add_u32 s35, s35, s7")
    k.dbg_init(dbg)
    k.srd_finish()
    stamp = k.stamp
    stamp()
    vm = VM()
    QST = 49152
    def q_dma(st):
        b = (st % 3) * QST
        out = []
        for hh in range(2):
            out.append(f"s_add_u32 m0, s37, {b + 4096*hh}\n    s_nop 0")
            for c in range(4):
                out.append(f"buffer_load_dwordx4 v{HDMA+c}, s[20:23], {'s34' if hh == 0 else 's38'} offen offset:{1024*c} lds")
        out.append(f"s_add_u32 m0, s30, {b + 32768}\n    s_nop 0")
        for c in range(4):
            out.append(f"buffer_load_dwordx4 v{WQD+c}, s[16:19], s33 offen offset:{1024*c} lds")
        out.append("s_add_u32 s34, s34, 128")
        out.append("s_add_u32 s38, s38, 128")
        out.append(f"s_add_u32 s33, s33, {64*8192}")
        return out
    def emit_vm(ins, tag):
        k.e(ins)
        if ins.startswith("buffer"): vm.issue(tag)
    def kv_dma(which, slot, emit):
        out = []
        if which == 'K':
            out.append(f"s_add_u32 m0, s30, {slot*16384}\n    s_nop 0")
            for c in range(4):
                out.append(f"buffer_load_dwordx4 v{KDMA+c}, s[8:11], s28 offen offset:{1024*c} lds")
            out.append("s_add_u32 s28, s28, 16384")
        else:
            out.append(f"s_add_u32 m0, s30, {65536 + slot*16384}\n    s_nop 0")
            for c in range(4):
                out.append(f"buffer_load_dwordx4 v{VDMA}, s[12:15], s29 offen offset:{1024*c} lds")
            out.append("s_add_u32 s29, s29, 16384")
        if emit:
            for o in out:
                k.e(o)
                if o.startswith("buffer"): vm.issue(which)
        return out
    k.e("s_add_u32 s38, s34, 36864")
    for st in range(3):
        for ins in q_dma(st): emit_vm(ins, f"S{st}")
    ACC = 40
    NF = 9 * 16
    QPF = 5
    QBAR = 16 - QPF + 2
    def qbar_gap(st): return -1 if st == 0 else (st-1)*16 + QBAR - 1
    issue = {}
    for F in range(NF):
        issue.setdefault(max(F - QPF, qbar_gap(F // 16)), []).append(('W', F))
    for st in range(9):
        for ks in range(4):
            issue.setdefault(max(st*16 + ks*4 - 4, qbar_gap(st)), []).insert(0, ('H', st*4+ks))
    dsq = []; cur = [0]
    def set_stage(st):
        if cur[0] != st:
            d = ((st % 3) - (cur[0] % 3)) * QST
            for r in list(range(HADDR, HADDR+4)) + list(range(WADDR, WADDR+4)):
                k.e(f"v_add_u32 v{r}, {d}, v{r}" if d > 0 else f"v_subrev_u32 v{r}, {-d}, v{r}")
            cur[0] = st
    def do_reads(g):
        for kind, idx in issue.get(g, []):
            if kind == 'W':
                st, ks, db = idx // 16, (idx % 16) // 4, idx % 4
                set_stage(st)
                r = RING + 4 * (idx % 8)
                k.e(f"ds_read_b64_tr_b16 v[{r}:{r+1}], v{WADDR+db} offset:{ks*4096}")
                k.e(f"ds_read_b64_tr_b16 v[{r+2}:{r+3}], v{WADDR+db} offset:{ks*4096+1024}")
                dsq.extend([('W', idx)] * 2)
            else:
                st, ks = idx // 4, idx % 4
                set_stage(st)
                for q in range(2):
                    r = HR + 8 * (idx % 2) + 4 * q
                    k.e(f"ds_read_b128 v[{r}:{r+3}], v{HADDR+ks} offset:{4096*q}")
                    dsq.append(('H', idx))
    def need(tags):
        i = max(i for i, t in enumerate(dsq) if t in tags)
        return len(dsq) - 1 - i
    k.e(f"s_waitcnt vmcnt({vm.wait_n('S0')})")
    k.e("s_barrier")
    do_reads(-1)
    pend = []
    for F in range(NF):
        st, ks, db = F // 16, (F % 16) // 4, F % 4
        k.e(f"s_waitcnt lgkmcnt({min(15, need([('W', F), ('H', st*4+ks)]))})")
        for q in range(2):
            d = ACC + (q*4+db)*16
            k.e(mf(vr(d, 16), vr(RING + 4*(F % 8), 4), vr(HR + 8*((st*4+ks) % 2) + 4*q, 4), "0" if (st == 0 and ks == 0) else vr(d, 16)))
            if q == 0:
                if F % 16 == QBAR - 1:
                    if st + 1 < 9:
                        k.e(f"s_waitcnt vmcnt({vm.wait_n(f'S{st+1}')}) lgkmcnt(0)")
                    else:
                        k.e("s_waitcnt lgkmcnt(0)")
                    k.e("s_barrier")
                    if st + 3 < 9: pend = [(i, f"S{st+3}") for i in q_dma(st + 3)]
                    elif st == 6: pend = [(i, 'K') for t in range(3) for i in kv_dma('K', t, False)]
                    elif st == 7: pend = [(i, 'V') for t in range(2) for i in kv_dma('V', t, False)]
                do_reads(F)
            for _ in range(2):
                if pend:
                    i, t = pend.pop(0); emit_vm(i, t)
            if 2*F + q < 128: k.e(f"v_accvgpr_write_b32 a{2*F+q}, 0")
    assert not pend
    stamp()
    k.e("s_nop 15")
    k.e(f"s_mov_b32 s6, 0x{QSCALE:x}")
    for q in range(2):
        for db in range(4):
            for t in range(2):
                b = ACC + (q*4+db)*16 + 8*t
                for j in range(8):
                    k.e(f"v_mul_f32 v{b+j}, s6, v{b+j}")
                for j in range(4):
                    k.e(f"v_cvt_pk_bf16_f32 v{XT+j}, v{b+2*j}, v{b+2*j+1}")
                k.e("s_nop 1")
                k.e(f"v_permlane32_swap_b32 v{XT}, v{XT+2}")
                k.e(f"v_permlane32_swap_b32 v{XT+1}, v{XT+3}")
                k.e("s_nop 1")
                for j in range(4):
                    k.e(f"v_accvgpr_write_b32 a{QA + (q*8 + 2*db + t)*4 + j}, v{XT+j}")
    k.e(f"v_mov_b32 v{LSUM}, 0"); k.e(f"v_mov_b32 v{LSUM+1}, 0")
    k.e("s_waitcnt vmcnt(0)")
    k.e("s_barrier")
    stamp()
    for ks in range(8):
        r = RING + 4 * ks
        k.e(f"ds_read_b128 v[{r}:{r+3}], v{KADDR+ks}")
    for ks in range(8):
        k.e(f"s_waitcnt lgkmcnt({7-ks})")
        r = RING + 4 * ks
        for q in range(2):
            d = SA_ + 16*q
            k.e(mf(vr(d, 16), vr(r, 4), ar(QA + (q*8+ks)*4, 4), "0" if ks == 0 else vr(d, 16)))
    k.e("s_nop 15")
    for q in range(2):
        rowmax(k, SA_, q, XT, XT+1)
        for i in range(16):
            k.e(f"v_sub_f32 v{NEGM+16*q+i}, 0, v{XT}")
            k.e(f"v_sub_f32 v{SA_+16*q+i}, v{SA_+16*q+i}, v{XT}")
    def frag_reads(it, f):
        sl = it % 4; sl1 = (it + 1) % 4
        r = RING + 4 * (f % 8)
        ph, j = f // 8, f % 8
        if ph == 0:
            return [f"ds_read_b128 v[{r}:{r+3}], v{KADDR+j} offset:{sl*16384 + 8192}"]
        if ph == 2:
            return [f"ds_read_b128 v[{r}:{r+3}], v{KADDR+j} offset:{sl1*16384}"]
        kk, db = j // 4, j % 4
        off = sl * 16384 + (8192 if ph == 3 else 0) + kk * 4096
        return [f"ds_read_b64_tr_b16 v[{r}:{r+1}], v{VADDR+db} offset:{off}",
                f"ds_read_b64_tr_b16 v[{r+2}:{r+3}], v{VADDR+db} offset:{off+2048}"]
    def nreads(f):
        return 1 if (f % 32) // 8 in (0, 2) else 2
    def mfma_of(t):
        f, q = t // 2, t % 2
        r = RING + 4 * (f % 8)
        ph, j = f // 8, f % 8
        if ph in (0, 2):
            S = SB_ if ph == 0 else SA_
            d = S + 16*q
            c = vr(NEGM + 16*q, 16) if j == 0 else vr(d, 16)
            return mf(vr(d, 16), vr(r, 4), ar(QA + (q*8+j)*4, 4), c)
        P = PA_ if ph == 1 else PB_
        kk, db = j // 4, j % 4
        o = (q*4+db)*16
        return mf(ar(o, 16), vr(r, 4), vr(P + 8*q + 4*kk, 4), ar(o, 16))
    smA = softmax_instrs(SA_, PA_)
    smB = softmax_instrs(SB_, PB_)
    winA = list(range(51, 64)) + list(range(0, 14))
    winB = list(range(19, 46))
    def distribute(ins, win):
        tot = sum(c for _, c in ins)
        res = {g: [] for g in win}
        acc = 0; i = 0
        for n, g in enumerate(win):
            target = tot * (n + 1) / len(win)
            while i < len(ins) and (acc + ins[i][1] / 2 <= target or n == len(win) - 1):
                res[g].append(ins[i][0]); acc += ins[i][1]; i += 1
        return res
    dA = distribute(smA, winA); dB = distribute(smB, winB)
    for g in range(51, 64):
        for ins in dA[g]: k.e(ins)
    for f in range(PF):
        for ins in frag_reads(0, f): k.e(ins)
    k.e("s_mov_b32 s31, 8")
    stamp()
    rares = []
    k.e(".p2align 6")
    k.label("attn_loop")
    for it in range(4):
        dmaK = kv_dma('K', (it + 3) % 4, False)
        dmaV = kv_dma('V', (it + 2) % 4, False)
        dma_at = {}
        seq = dmaK + dmaV
        slots = [1, 3, 5, 7, 9, 15, 17, 17, 47, 49, 49, 49]
        for s_, ins in zip(slots, seq):
            dma_at.setdefault(s_, []).append(ins)
        for t in range(64):
            f, q = t // 2, t % 2
            if t == 0:
                k.e("s_waitcnt vmcnt(8)")
                k.e("s_barrier")
            if q == 0:
                n = sum(nreads(f + x) for x in range(1, PF))
                k.e(f"s_waitcnt lgkmcnt({n})")
            k.e(mfma_of(t))
            if q == 0:
                f2 = f + PF
                for ins in frag_reads(it + f2 // 32, f2 % 32): k.e(ins)
            for ins in dma_at.get(t, []): k.e(ins)
            for ins in dA.get(t, []): k.e(ins)
            for ins in dB.get(t, []): k.e(ins)
            if t in (14, 46):
                lab = k.newlabel("rare"); ret = k.newlabel("ret")
                k.e(f"v_max_f32 v{TMP+4}, v{LT}, v{LT+1}")
                k.e(f"v_cmp_lt_f32 vcc, s32, v{TMP+4}")
                k.e(f"s_cbranch_vccnz {lab}")
                k.label(ret)
                k.e(f"v_add_f32 v{LSUM}, v{LSUM}, v{LT}")
                k.e(f"v_add_f32 v{LSUM+1}, v{LSUM+1}, v{LT+1}")
                if t == 14: rares.append((lab, ret, SA_, SB_, PA_))
                else: rares.append((lab, ret, SB_, SA_, PB_))
    k.e("s_sub_u32 s31, s31, 1")
    k.e("s_cmp_lg_u32 s31, 0")
    k.e("s_cbranch_scc1 attn_loop")
    stamp()
    k.e("s_nop 15")
    k.e("s_waitcnt vmcnt(0) lgkmcnt(0)")
    for q in range(2):
        l = LSUM + q
        k.e(f"v_mov_b32 v{XT}, v{l}")
        k.e("s_nop 1")
        k.e(f"v_permlane32_swap_b32 v{XT}, v{l}")
        k.e("s_nop 1")
        k.e(f"v_add_f32 v{l}, v{l}, v{XT}")
        k.e(f"v_rcp_f32 v{l}, v{l}")
        k.e("s_nop 0")
    k.e("s_barrier")
    k.e("s_mul_i32 s6, s5, 17408")
    k.e(f"v_mul_u32_u24 v4, 272, v{vL31}")
    k.e(f"v_lshl_add_u32 v4, v{vHALF}, 4, v4")
    k.e("v_add_u32 v4, s6, v4")
    k.e(f"v_lshrrev_b32 v5, 4, v{vLANE}")
    k.e(f"v_and_b32 v6, 15, v{vLANE}")
    k.e("v_lshlrev_b32 v6, 4, v6")
    k.e("v_mul_u32_u24 v7, 272, v5")
    k.e("v_add3_u32 v7, v7, v6, s6")
    k.e("v_lshl_add_u32 v6, v5, 13, v6")
    n = 0
    for q in range(2):
        for db in range(4):
            for gp in range(2):
                T = XT + 12 * (n % 2); n += 1
                for j in range(8):
                    k.e(f"v_accvgpr_read_b32 v{T+4+j}, a{(q*4+db)*16 + 8*gp + j}")
                for j in range(8):
                    k.e(f"v_mul_f32 v{T+4+j}, v{T+4+j}, v{LSUM+q}")
                for j in range(4):
                    k.e(f"v_cvt_pk_bf16_f32 v{T+j}, v{T+4+2*j}, v{T+5+2*j}")
                k.e("s_nop 1")
                k.e(f"v_permlane32_swap_b32 v{T}, v{T+2}")
                k.e(f"v_permlane32_swap_b32 v{T+1}, v{T+3}")
                k.e(f"ds_write_b128 v4, v[{T}:{T+3}] offset:{32*272*q + 64*db + 32*gp}")
    k.e("s_waitcnt lgkmcnt(0)")
    for j in range(16):
        k.e(f"ds_read_b128 v[{40+4*j}:{43+4*j}], v7 offset:{4*272*j}")
    for j in range(16):
        k.e(f"s_waitcnt lgkmcnt({15-j})")
        k.e(f"buffer_store_dwordx4 v[{40+4*j}:{43+4*j}], v6, s[24:27], s35 offen")
        k.e("s_add_u32 s35, s35, 32768")
    k.dbg_flush("attn_done")
    k.label("attn_done")
    k.e("s_endpgm")
    for r in rares:
        rare_path(k, *r)
    return k
```

```python
import layout as L

KA = dict(x=0, k=8, v=16, wq=24, wo=32, bx=40, w1=48, w2=56, c=64, wmod=72, out=80, dbg=88, ws=96)

class Kern:
    def __init__(self, name, grid, block, lds, nvgpr=256, nagpr=0, nsgpr=102):
        self.name = name; self.grid = grid; self.block = block; self.lds = lds
        self.nvgpr = nvgpr; self.nagpr = nagpr; self.nsgpr = nsgpr
        self.lines = []
        self.uid = 0
    def e(self, s):
        self.lines.append("    " + s)
    def c(self, s):
        self.lines.append("    ; " + s)
    def label(self, l):
        self.lines.append(l + ":")
    def newlabel(self, p="L"):
        self.uid += 1
        return f"{self.name}_{p}{self.uid}"
    def srd(self, sd, karg, size, off=0):
        self.e(f"s_load_dwordx2 s[{sd}:{sd+1}], s[0:1], {KA[karg]}")
        self.pend = getattr(self, 'pend', []) + [(sd, size, off)]
    def srd_finish(self):
        self.e("s_waitcnt lgkmcnt(0)")
        for sd, size, off in self.pend:
            if off:
                self.e(f"s_add_u32 s{sd}, s{sd}, 0x{off:x}")
                self.e(f"s_addc_u32 s{sd+1}, s{sd+1}, 0")
            self.e(f"s_and_b32 s{sd+1}, s{sd+1}, 0xffff")
            self.e(f"s_mov_b32 s{sd+2}, 0x{size:x}")
            self.e(f"s_mov_b32 s{sd+3}, 0x00020000")
        self.pend = []
    def dbg_init(self, on):
        self.dbg = on; self.nst = 0
        if on: self.srd(60, 'dbg', 256)
    def stamp(self):
        if getattr(self, 'dbg', False):
            if self.nst == 0: self.e("s_memrealtime s[90:91]")
            self.e(f"s_memtime s[{64+2*self.nst}:{65+2*self.nst}]")
            self.nst += 1
    def dbg_flush(self, done, wg=77, wavereg='s5'):
        if getattr(self, 'dbg', False):
            self.e("s_waitcnt vmcnt(0)")
            self.stamp()
            self.e("s_memrealtime s[92:93]")
            self.e("s_waitcnt lgkmcnt(0)")
            self.e(f"s_cmp_lg_u32 s2, {wg}")
            self.e(f"s_cbranch_scc1 {done}")
            self.e(f"s_cmp_lg_u32 {wavereg}, 0")
            self.e(f"s_cbranch_scc1 {done}")
            self.e("v_mov_b32 v5, 0")
            for i in range(self.nst):
                self.e(f"s_sub_u32 s6, s{64+2*i}, s64")
                self.e("v_mov_b32 v4, s6")
                self.e(f"buffer_store_dword v4, v5, s[60:63], 0 offen offset:{4*i}")
            self.e("s_sub_u32 s6, s92, s90")
            self.e("v_mov_b32 v4, s6")
            self.e("buffer_store_dword v4, v5, s[60:63], 0 offen offset:28")
    def launch_line(self):
        g = self.grid; b = self.block
        return f"; @launch kernel={self.name} grid=({g[0]},{g[1]},{g[2]}) block=({b[0]},{b[1]},{b[2]}) lds={self.lds}"
    def text(self):
        acc = (self.nvgpr + 3) // 4 * 4
        nfv = acc + self.nagpr if self.nagpr else self.nvgpr
        head = [f".globl {self.name}", ".p2align 8", f".type {self.name},@function", f"{self.name}:"]
        return "\n".join(head + self.lines) + "\n"
    def desc(self):
        acc = (self.nvgpr + 3) // 4 * 4
        nfv = acc + self.nagpr if self.nagpr else self.nvgpr
        return f""".p2align 6
.amdhsa_kernel {self.name}
  .amdhsa_next_free_vgpr {nfv}
  .amdhsa_next_free_sgpr {self.nsgpr}
  .amdhsa_accum_offset {acc}
  .amdhsa_group_segment_fixed_size 0
  .amdhsa_kernarg_size 104
  .amdhsa_user_sgpr_count 2
  .amdhsa_user_sgpr_kernarg_segment_ptr 1
  .amdhsa_system_sgpr_workgroup_id_x 1
  .amdhsa_float_denorm_mode_32 3
  .amdhsa_float_denorm_mode_16_64 3
.end_amdhsa_kernel
"""

def wave_sum(k, v, s0):
    for m in ("quad_perm:[1,0,3,2]", "quad_perm:[2,3,0,1]", "row_half_mirror", "row_mirror"):
        k.e("s_nop 1")
        k.e(f"v_add_f32_dpp v{v}, v{v}, v{v} {m} row_mask:0xf bank_mask:0xf")
    k.e("s_nop 1")
    for i in range(4):
        k.e(f"v_readlane_b32 s{s0+i}, v{v}, {16*i}")
    k.e("s_nop 1")
    k.e(f"v_mov_b32 v{v}, s{s0}")
    for i in range(1, 4):
        k.e(f"v_add_f32 v{v}, s{s0+i}, v{v}")

def bf16r(k, vd, vs):
    k.e(f"v_cvt_pk_bf16_f32 v{vd}, v{vs}, v{vs}")
    k.e(f"v_lshlrev_b32 v{vd}, 16, v{vd}")

def bf16r2(k, va, vb, vt):
    k.e(f"v_cvt_pk_bf16_f32 v{vt}, v{va}, v{vb}")
    k.e(f"v_lshlrev_b32 v{va}, 16, v{vt}")
    k.e(f"v_and_b32 v{vb}, 0xffff0000, v{vt}")

def assemble(kerns, order, header):
    out = [header.rstrip("\n")]
    for kn in order:
        out.append(kn.launch_line())
    out.append('.amdgcn_target "amdgcn-amd-amdhsa--gfx950"')
    out.append(".text")
    seen = []
    for kn in kerns:
        out.append(kn.text())
    out.append('.section .rodata,"a"')
    for kn in kerns:
        out.append(kn.desc())
    return "\n".join(out)
```

```python
import os
from gen_common import *
from gen_attn import VM, mf, vr, ar

NLOG2E = 0xbfb8aa3b
NSPLIT = 4

def silu_group(k, b, T, waddr, off):
    for j in range(4):
        bf16r2(k, b+2*j, b+2*j+1, T+j)
    for j in range(8):
        k.e(f"v_mul_f32 v{T+4+j}, s25, v{b+j}")
    for j in range(8):
        k.e(f"v_exp_f32 v{T+4+j}, v{T+4+j}")
    for j in range(8):
        k.e(f"v_add_f32 v{T+4+j}, 1.0, v{T+4+j}")
    for j in range(8):
        k.e(f"v_rcp_f32 v{T+4+j}, v{T+4+j}")
    for j in range(8):
        k.e(f"v_mul_f32 v{b+j}, v{b+j}, v{T+4+j}")
    for j in range(4):
        k.e(f"v_cvt_pk_bf16_f32 v{T+j}, v{b+2*j}, v{b+2*j+1}")
    k.e("s_nop 1")
    k.e(f"v_permlane32_swap_b32 v{T}, v{T+2}")
    k.e(f"v_permlane32_swap_b32 v{T+1}, v{T+3}")
    k.e(f"ds_write_b128 v{waddr}, v[{T}:{T+3}] offset:{off}")

RAW = 81920
def gen_gemm(name, xk, xoff, xsize, ldx, wk, wsize, ldw, nstage, mode):
    part = mode == 'part'
    TM = 64 if part else 128
    XB = TM * 128
    STAGE = XB + 36864
    KS = [0, 1] if part else [0, 1, 2, 3]
    MPS = 9 * len(KS)
    PFD = 8; NR = 10
    k = Kern(name, (256,1,1), (512,1,1), 3*STAGE if not part else max(3*STAGE, 64*1168), nvgpr=256, nsgpr=102)
    ACC = 100; WR = 32; XR = 80
    XA = 4; WA = 8; XD = 10; WD = 14
    done = f"{name}_done"
    k.e("s_cmp_ge_u32 s2, 256")
    k.e(f"s_cbranch_scc1 {done}")
    k.srd(8, xk, xsize, xoff); k.srd(12, wk, wsize)
    if part: k.srd(16, 'ws', NSPLIT*2048*576*4, L.PART)
    else: k.srd(16, 'ws', 2048*4608*2, L.U)
    k.dbg_init(os.environ.get('DBG','0')=='1')
    k.e("v_lshrrev_b32 v4, 6, v0")
    k.e("v_and_b32 v1, 63, v0")
    k.e("v_readfirstlane_b32 s5, v4")
    k.e("v_and_b32 v2, 31, v0")
    k.e("v_lshrrev_b32 v3, 5, v1")
    k.e("s_and_b32 s6, s2, 7")
    k.e("s_lshr_b32 s7, s2, 3")
    if part:
        k.e("s_and_b32 s3, s6, 1"); k.e("s_lshl_b32 s3, s3, 4"); k.e("s_and_b32 s24, s7, 15"); k.e("s_add_u32 s3, s3, s24")
        k.e("s_lshr_b32 s4, s7, 4")
        k.e("s_lshr_b32 s6, s6, 1")
        k.e(f"s_mul_i32 s23, s6, {nstage*64}")
    else:
        k.e("s_and_b32 s3, s6, 1"); k.e("s_lshl_b32 s3, s3, 3"); k.e("s_and_b32 s24, s7, 7"); k.e("s_add_u32 s3, s3, s24")
        k.e("s_lshr_b32 s4, s6, 1"); k.e("s_lshl_b32 s4, s4, 2"); k.e("s_lshr_b32 s24, s7, 3"); k.e("s_add_u32 s4, s4, s24")
        k.e("s_mov_b32 s23, 0")
    k.e(f"s_mul_i32 s24, s3, {TM}")
    if part:
        k.e("s_mul_i32 s22, s24, 2304"); k.e(f"s_mul_i32 s25, s6, {2048*2304}"); k.e("s_add_u32 s22, s22, s25")
        k.e("s_mul_i32 s25, s4, 1152"); k.e("s_add_u32 s22, s22, s25")
    else:
        k.e("s_mul_i32 s22, s24, 9216"); k.e("s_mul_i32 s25, s4, 576"); k.e("s_add_u32 s22, s22, s25")
    k.srd_finish()
    k.stamp()
    k.e("s_cmp_ge_u32 s5, 4")
    k.e(f"s_cbranch_scc1 {name}_loader")
    if part:
        k.e("s_and_b32 s26, s5, 1")
        k.e("s_lshr_b32 s27, s5, 1")
        k.e("s_lshl_b32 s26, s26, 12")
        k.e("s_lshl_b32 s28, s27, 2")
        k.e(f"s_mul_i32 s27, s27, {2*9216}")
    else:
        k.e("s_lshl_b32 s26, s5, 12")
        k.e("s_mov_b32 s28, 0"); k.e("s_mov_b32 s27, 0")
    k.e("v_bfe_u32 v28, v2, 1, 3")
    k.e("v_lshlrev_b32 v29, 7, v2")
    k.e("v_add_u32 v29, s26, v29")
    k.e("v_add_u32 v31, s28, v3")
    for i in range(len(KS)):
        k.e(f"v_add_u32 v30, {2*i}, v31")
        k.e("v_xor_b32 v30, v30, v28")
        k.e(f"v_lshl_add_u32 v{XA+i}, v30, 4, v29")
    k.e("v_bfe_u32 v28, v1, 2, 2")
    k.e("v_lshl_add_u32 v28, v3, 3, v28")
    k.e("v_mul_u32_u24 v28, 576, v28")
    k.e("v_bfe_u32 v29, v1, 4, 1")
    k.e("v_lshl_add_u32 v28, v29, 5, v28")
    k.e("v_and_b32 v29, 3, v1")
    k.e("v_lshl_add_u32 v28, v29, 3, v28")
    k.e(f"v_add_u32 v{WA}, s27, v28")
    NM = nstage * MPS
    BAR = MPS - PFD + 3
    def bar_gap(s): return -1 if s == 0 else (s-1)*MPS + BAR - 1
    issue = {}
    for F in range(NM):
        issue.setdefault(max(F - PFD, bar_gap(F // MPS)), []).append(('W', F))
    nk = len(KS)
    for s in range(nstage):
        for i in range(nk):
            issue.setdefault(max(s*MPS + i*9 - PFD - 1, bar_gap(s)), []).insert(0, ('X', s*nk+i))
    dsq = []; cur = [0]
    def set_stage(s):
        if cur[0] != s:
            d = ((s % 3) - (cur[0] % 3)) * STAGE
            for r in list(range(XA, XA+nk)) + [WA]:
                k.e(f"v_add_u32 v{r}, {d}, v{r}" if d > 0 else f"v_subrev_u32 v{r}, {-d}, v{r}")
            cur[0] = s
    def do_reads(g):
        for kind, idx in issue.get(g, []):
            if kind == 'W':
                s, rem = idx // MPS, idx % MPS
                i, nb = rem // 9, rem % 9
                set_stage(s)
                r = WR + 4 * (idx % NR)
                off = XB + nb*64 + i*9216
                k.e(f"ds_read_b64_tr_b16 v[{r}:{r+1}], v{WA} offset:{off}")
                k.e(f"ds_read_b64_tr_b16 v[{r+2}:{r+3}], v{WA} offset:{off+2304}")
                dsq.extend([('W', idx)] * 2)
            else:
                s, i = idx // nk, idx % nk
                set_stage(s)
                r = XR + 4 * (idx % 4)
                k.e(f"ds_read_b128 v[{r}:{r+3}], v{XA+i}")
                dsq.append(('X', idx))
    def need(tags):
        i = max(i for i, t in enumerate(dsq) if t in tags)
        return len(dsq) - 1 - i
    k.e("s_barrier")
    k.stamp()
    do_reads(-1)
    for F in range(NM):
        s, rem = F // MPS, F % MPS
        i, nb = rem // 9, rem % 9
        k.e(f"s_waitcnt lgkmcnt({min(need([('W', F), ('X', s*nk+i)]), 15)})")
        d = ACC + 16*nb
        k.e(mf(vr(d, 16), vr(WR + 4*(F % NR), 4), vr(XR + 4*((s*nk+i) % 4), 4), "0" if F < 9 else vr(d, 16)))
        if rem == BAR - 1 and s + 1 < nstage:
            k.e("s_waitcnt lgkmcnt(0)")
            k.e("s_barrier")
        do_reads(F)
    k.stamp()
    k.e("s_nop 15")
    k.e("s_barrier")
    if part: LST = 1168
    else: LST = 592
    k.e("s_lshr_b32 s26, s26, 7")
    k.e("v_add_u32 v4, s26, v2")
    k.e(f"v_mul_u32_u24 v4, {LST}, v4")
    k.e("v_lshl_add_u32 v4, v3, 4, v4")
    if part:
        l1 = k.newlabel("wk1"); l2 = k.newlabel("wkj")
        k.e("s_cmp_lg_u32 s28, 0")
        k.e(f"s_cbranch_scc1 {l1}")
        k.e("s_barrier")
        for h in range(3):
            for i in range(12):
                idx = h*12 + i
                k.e(f"ds_read_b128 v[{WR+4*i}:{WR+4*i+3}], v4 offset:{128*(idx//4)+32*(idx%4)}")
            for i in range(12):
                idx = h*12 + i
                k.e(f"s_waitcnt lgkmcnt({11-i})")
                for j in range(4):
                    k.e(f"v_add_f32 v{ACC+4*idx+j}, v{ACC+4*idx+j}, v{WR+4*i+j}")
                k.e(f"ds_write_b128 v4, v[{ACC+4*idx}:{ACC+4*idx+3}] offset:{128*(idx//4)+32*(idx%4)}")
            k.e("s_waitcnt lgkmcnt(0)")
        k.e(f"s_branch {l2}")
        k.label(l1)
        for idx in range(36):
            k.e(f"ds_write_b128 v4, v[{ACC+4*idx}:{ACC+4*idx+3}] offset:{128*(idx//4)+32*(idx%4)}")
        k.e("s_waitcnt lgkmcnt(0)")
        k.e("s_barrier")
        k.label(l2)
    else:
        k.e(f"s_lshl_b32 s25, s5, 14")
        k.e("v_lshlrev_b32 v5, 4, v1")
        k.e("v_add_u32 v5, s25, v5")
        k.e(f"v_add_u32 v5, {RAW}, v5")
        for i in range(16):
            r = ACC + 80 + 4*i
            k.e(f"ds_write_b128 v5, v[{r}:{r+3}] offset:{1024*i}")
        k.e("s_waitcnt lgkmcnt(0)")
        k.e("s_barrier")
        k.e(f"s_mov_b32 s25, 0x{NLOG2E:x}")
        n = 0
        for nb in range(5):
            for gp in range(2):
                silu_group(k, ACC + 16*nb + 8*gp, WR + 16 * (n % 3), 4, 64*nb+32*gp); n += 1
        k.e("s_waitcnt lgkmcnt(0)")
    k.e(f"s_branch {name}_store")
    k.label(f"{name}_loader")
    k.e("s_sub_u32 s5, s5, 4")
    nxc = TM // 32
    k.e(f"s_mul_i32 s25, s5, {TM//4}"); k.e("s_add_u32 s25, s25, s24")
    k.e(f"s_mul_i32 s20, s25, {ldx}"); k.e("s_lshl_b32 s25, s23, 1"); k.e("s_add_u32 s20, s20, s25")
    k.e("s_lshl_b32 s25, s5, 4"); k.e("s_add_u32 s25, s25, s23"); k.e(f"s_mul_i32 s21, s25, {ldw}")
    k.e("s_mul_i32 s25, s4, 576"); k.e("s_add_u32 s21, s21, s25")
    k.e(f"s_mul_i32 s26, s5, {nxc*1024}")
    k.e("s_mul_i32 s27, s5, 9216"); k.e(f"s_add_u32 s27, s27, {XB}")
    k.e("v_lshrrev_b32 v28, 3, v1")
    k.e("v_and_b32 v29, 7, v1")
    k.e("v_lshrrev_b32 v30, 4, v1")
    k.e(f"s_mov_b32 s25, {ldx}")
    for c in range(nxc):
        k.e(f"v_add_u32 v31, {4*(c&1)}, v30")
        k.e("v_xor_b32 v31, v31, v29")
        k.e("v_lshlrev_b32 v31, 4, v31")
        k.e(f"v_add_u32 v{XD+c}, {8*c}, v28")
        k.e(f"v_mul_lo_u32 v{XD+c}, v{XD+c}, s25")
        k.e(f"v_add_u32 v{XD+c}, v{XD+c}, v31")
        if c: k.e(f"v_subrev_u32 v{XD+c}, {1024*c}, v{XD+c}")
    for P in range(576): assert (P * 1821) >> 16 == P // 36
    k.e(f"s_mov_b32 s25, {ldw}")
    for j in range(9):
        k.e(f"v_add_u32 v28, {64*j}, v1")
        k.e("v_mul_u32_u24 v29, 1821, v28")
        k.e("v_lshrrev_b32 v29, 16, v29")
        k.e("v_mul_u32_u24 v30, 36, v29")
        k.e("v_sub_u32 v28, v28, v30")
        k.e(f"v_mul_lo_u32 v{WD+j}, v29, s25")
        k.e(f"v_lshl_add_u32 v{WD+j}, v28, 4, v{WD+j}")
        if j % 4: k.e(f"v_subrev_u32 v{WD+j}, {1024*(j%4)}, v{WD+j}")
    vm = VM()
    def dma(s):
        b = (s % 3) * STAGE
        k.e(f"s_add_u32 m0, s26, {b}"); k.e("s_nop 0")
        for c in range(nxc):
            k.e(f"buffer_load_dwordx4 v{XD+c}, s[8:11], s20 offen offset:{1024*c} lds"); vm.issue(s)
        for j in range(9):
            if j % 4 == 0:
                k.e(f"s_add_u32 m0, s27, {b + 4096*(j//4)}"); k.e("s_nop 0")
            k.e(f"buffer_load_dwordx4 v{WD+j}, s[12:15], s21 offen offset:{1024*(j%4)} lds"); vm.issue(s)
        k.e("s_add_u32 s20, s20, 128")
        k.e(f"s_add_u32 s21, s21, {64*ldw}")
    for s in range(3): dma(s)
    k.e(f"s_waitcnt vmcnt({vm.wait_n(0)})")
    k.e("s_barrier")
    for s in range(nstage - 1):
        k.e(f"s_waitcnt vmcnt({vm.wait_n(s+1)})")
        k.e("s_barrier")
        if s + 3 < nstage: dma(s + 3)
    k.e("s_barrier")
    k.e("s_barrier")
    if not part:
        k.e(f"s_lshl_b32 s25, s5, 14")
        k.e("v_lshlrev_b32 v5, 4, v1")
        k.e("v_add_u32 v5, s25, v5")
        k.e(f"v_add_u32 v5, {RAW}, v5")
        for i in range(16):
            r = ACC + 4*i
            k.e(f"ds_read_b128 v[{r}:{r+3}], v5 offset:{1024*i}")
        k.e("s_lshl_b32 s26, s5, 5")
        k.e("v_add_u32 v4, s26, v2")
        k.e("v_mul_u32_u24 v4, 592, v4")
        k.e("v_lshl_add_u32 v4, v3, 4, v4")
        k.e(f"s_mov_b32 s25, 0x{NLOG2E:x}")
        n = 0
        for nb in range(4):
            for gp in range(2):
                if n == 0: k.e("s_waitcnt lgkmcnt(0)")
                silu_group(k, ACC + 16*nb + 8*gp, WR + 16 * (n % 3), 4, 64*(nb+5)+32*gp); n += 1
        k.e("s_waitcnt lgkmcnt(0)")
    k.e("s_add_u32 s5, s5, 4")
    k.label(f"{name}_store")
    k.e("s_barrier")
    if part: PCS, GST, MAG = 72, 2304, 911
    else: PCS, GST, MAG = 36, 9216, 1821
    for P in range(576): assert (P * MAG) >> 16 == P // PCS
    RPG = 576 // PCS
    k.e(f"s_mul_i32 s25, s5, {RPG*LST}")
    k.e(f"s_mul_i32 s26, s5, {RPG*GST}")
    k.e("s_add_u32 s22, s22, s26")
    for j in range(9):
        k.e(f"v_add_u32 v28, {64*j}, v1")
        k.e(f"v_mul_u32_u24 v29, {MAG}, v28")
        k.e("v_lshrrev_b32 v29, 16, v29")
        k.e(f"v_mul_u32_u24 v30, {PCS}, v29")
        k.e("v_sub_u32 v28, v28, v30")
        k.e("v_lshlrev_b32 v28, 4, v28")
        k.e(f"v_mul_u32_u24 v30, {LST}, v29")
        k.e("v_add3_u32 v30, v30, v28, s25")
        k.e(f"ds_read_b128 v[{WR+4*j}:{WR+4*j+3}], v30")
        k.e(f"v_mul_u32_u24 v30, {GST}, v29")
        k.e(f"v_add_u32 v{5+j}, v30, v28")
    for j in range(9):
        k.e(f"s_waitcnt lgkmcnt({8-j})")
        k.e(f"buffer_store_dwordx4 v[{WR+4*j}:{WR+4*j+3}], v{5+j}, s[16:19], s22 offen")
    k.dbg_flush(done)
    k.label(done)
    k.e("s_endpgm")
    return k

def gen_gemms():
    return {
        'oproj': gen_gemm("oproj_kernel", 'ws', L.O, 2048*4096*2, 8192, 'wo', 4096*576*2, 1152, 16, 'part'),
        'ffn1': gen_gemm("ffn1_kernel", 'ws', L.H2, 2048*576*2, 1152, 'w1', 576*4608*2, 9216, 9, 'silu'),
        'ffn2': gen_gemm("ffn2_kernel", 'ws', L.U, 2048*4608*2, 9216, 'w2', 4608*576*2, 1152, 18, 'part'),
    }
```

```python
from gen_common import *

class VM:
    def __init__(self): self.q = []
    def issue(self, tag): self.q.append(tag)
    def wait_n(self, tag):
        idx = max(i for i, t in enumerate(self.q) if t == tag)
        return len(self.q) - 1 - idx

QSCALE = 0x3e0293ee
THR = 0x4b800000

vLANE, vL31, vHALF = 1, 2, 3
KADDR = 8
VADDR = 16
KDMA = 20
VDMA, WDMA = 24, 25
LSUM = 26
LT = 28
TMP = 30
SA_, SB_ = 40, 72
PA_, PB_ = 104, 120
NEGM = 136
RING = 168
WADDR = 200
HDMA = 204
WQD = 232
HADDR = 236
HR = 240
XT = 208
QA = 128
PF = 6

def mf(D, A, B, C):
    return f"v_mfma_f32_32x32x16_bf16 {D}, {A}, {B}, {C}"
def vr(b, n): return f"v[{b}:{b+n-1}]"
def ar(b, n): return f"a[{b}:{b+n-1}]"

def softmax_instrs(S, P, first_done=None):
    out = []
    for q in range(2):
        for pr in range(8):
            ta = TMP + (pr % 2) * 2; tb = ta + 1
            s = S + 16 * q + 2 * pr
            out.append((f"v_exp_f32 v{ta}, v{s}", 8))
            out.append((f"v_exp_f32 v{tb}, v{s+1}", 8))
            if pr == 0:
                out.append(("s_nop 0", 4))
                out.append((f"v_add_f32 v{LT+q}, v{ta}, v{tb}", 4))
            else:
                out.append((f"v_add_f32 v{LT+q}, v{LT+q}, v{ta}", 4))
                out.append((f"v_add_f32 v{LT+q}, v{LT+q}, v{tb}", 4))
            out.append((f"v_cvt_pk_bf16_f32 v{P+8*q+pr}, v{ta}, v{tb}", 4))
    return out

def rowmax(k, S, q, t, t2):
    b = S + 16 * q
    k.e(f"v_max3_f32 v{t}, v{b}, v{b+1}, v{b+2}")
    for i in range(3, 15, 2):
        k.e(f"v_max3_f32 v{t}, v{t}, v{b+i}, v{b+i+1}")
    k.e(f"v_max_f32 v{t}, v{t}, v{b+15}")
    k.e(f"v_mov_b32 v{t2}, v{t}")
    k.e("s_nop 1")
    k.e(f"v_permlane32_swap_b32 v{t2}, v{t}")
    k.e("s_nop 1")
    k.e(f"v_max_f32 v{t}, v{t}, v{t2}")

def rare_path(k, lab, ret, SX, SY, PX):
    k.label(lab)
    k.e("s_nop 15"); k.e("s_nop 15")
    for q in range(2):
        t, t2, f = XT, XT + 1, XT + 2
        rowmax(k, SX, q, t, t2)
        k.e(f"v_max_f32 v{t}, 0, v{t}")
        k.e(f"v_sub_f32 v{f}, 0, v{t}")
        k.e(f"v_exp_f32 v{f}, v{f}")
        k.e("s_nop 0")
        k.e(f"v_mul_f32 v{LSUM+q}, v{LSUM+q}, v{f}")
        for i in range(64):
            k.e(f"v_accvgpr_read_b32 v{t2}, a{64*q+i}")
            k.e(f"v_mul_f32 v{t2}, v{t2}, v{f}")
            k.e(f"v_accvgpr_write_b32 a{64*q+i}, v{t2}")
        for i in range(16):
            k.e(f"v_sub_f32 v{NEGM+16*q+i}, v{NEGM+16*q+i}, v{t}")
            k.e(f"v_sub_f32 v{SX+16*q+i}, v{SX+16*q+i}, v{t}")
            k.e(f"v_sub_f32 v{SY+16*q+i}, v{SY+16*q+i}, v{t}")
    for ins, _ in softmax_instrs(SX, PX):
        k.e(ins)
    k.e("s_nop 1")
    k.e(f"s_branch {ret}")

def gen_attn(dbg=False):
    k = Kern("attn_kernel", (256,1,1), (256,1,1), 147456, nvgpr=256, nagpr=256)
    k.tl_start()
    k.e("s_cmp_ge_u32 s2, 256")
    k.e("s_cbranch_scc1 attn_done")
    k.srd(8, 'k', 32*2048*128*2); k.srd(12, 'v', 32*2048*128*2); k.srd(16, 'wq', 576*4096*2)
    k.srd(20, 'ws', 2048*576*2, L.H1); k.srd(24, 'ws', 2048*4096*2, L.O)
    k.srd(40, 'wo', 4096*576*2); k.srd(44, 'w1', 576*4608*2); k.srd(48, 'w2', 4608*576*2)
    k.e("s_and_b32 s3, s2, 31")
    k.e("s_lshr_b32 s4, s2, 5")
    k.e("v_lshrrev_b32 v4, 6, v0")
    k.e(f"v_and_b32 v{vLANE}, 63, v0")
    k.e("v_readfirstlane_b32 s5, v4")
    k.e(f"v_and_b32 v{vL31}, 31, v0")
    k.e(f"v_lshrrev_b32 v{vHALF}, 5, v{vLANE}")
    k.e(f"v_and_b32 v4, 15, v{vL31}")
    k.e(f"v_lshlrev_b32 v5, 8, v{vL31}")
    for ks in range(8):
        k.e(f"v_add_u32 v6, {2*ks}, v{vHALF}")
        k.e("v_xor_b32 v6, v6, v4")
        k.e(f"v_lshl_add_u32 v{KADDR+ks}, v6, 4, v5")
    k.e(f"v_bfe_u32 v4, v{vLANE}, 2, 2")
    k.e(f"v_and_b32 v5, 3, v{vLANE}")
    k.e(f"v_bfe_u32 v6, v{vLANE}, 4, 1")
    k.e("v_lshlrev_b32 v5, 3, v5")
    k.e("v_lshl_add_u32 v5, v6, 5, v5")
    k.e("v_lshl_add_u32 v5, v4, 8, v5")
    for db in range(4):
        k.e(f"v_xor_b32 v6, {db}, v4")
        k.e("v_lshl_add_u32 v6, v6, 6, v5")
        k.e(f"v_lshl_add_u32 v{WADDR+db}, v{vHALF}, 11, v6")
        k.e(f"v_lshl_add_u32 v{VADDR+db}, v{vHALF}, 10, v6")
        k.e(f"v_add_u32 v{VADDR+db}, 0x10000, v{VADDR+db}")
    k.e(f"v_lshrrev_b32 v4, 4, v{vLANE}")
    k.e(f"v_and_b32 v5, 15, v{vLANE}")
    for c in range(4):
        k.e(f"v_add_u32 v6, {4*c}, v4")
        k.e("v_xor_b32 v6, v6, v5")
        k.e("v_lshlrev_b32 v6, 4, v6")
        k.e(f"v_lshl_add_u32 v{KDMA+c}, v4, 8, v6")
    k.e("v_lshlrev_b32 v6, 2, v4")
    k.e("v_xor_b32 v6, v6, v5")
    k.e("v_lshlrev_b32 v6, 4, v6")
    k.e(f"v_lshl_add_u32 v{VDMA}, v4, 8, v6")
    k.e(f"v_lshl_add_u32 v{WDMA}, v4, 13, v6")
    k.e(f"v_lshrrev_b32 v4, 3, v{vLANE}")
    k.e(f"v_and_b32 v5, 7, v{vLANE}")
    k.e(f"v_lshrrev_b32 v6, 4, v{vLANE}")
    k.e("s_movk_i32 s6, 1152")
    for c in range(4):
        k.e(f"v_add_u32 v7, {4*(c&1)}, v6")
        k.e("v_xor_b32 v7, v7, v5")
        k.e("v_lshlrev_b32 v7, 4, v7")
        k.e(f"v_add_u32 v{HDMA+c}, {8*c}, v4")
        k.e(f"v_mul_lo_u32 v{HDMA+c}, v{HDMA+c}, s6")
        k.e(f"v_add_u32 v{HDMA+c}, v{HDMA+c}, v7")
        if c: k.e(f"v_subrev_u32 v{HDMA+c}, {1024*c}, v{HDMA+c}")
    for c in range(4):
        k.e(f"v_add_u32 v{WQD+c}, {4*c*8192 - 1024*c}, v{WDMA}")
    k.e(f"v_bfe_u32 v4, v{vL31}, 1, 3")
    k.e(f"v_lshlrev_b32 v5, 7, v{vL31}")
    k.e("s_lshl_b32 s6, s5, 13")
    k.e("v_add_u32 v5, s6, v5")
    for ks in range(4):
        k.e(f"v_add_u32 v6, {2*ks}, v{vHALF}")
        k.e("v_xor_b32 v6, v6, v4")
        k.e(f"v_lshl_add_u32 v{HADDR+ks}, v6, 4, v5")
    for db in range(4):
        k.e(f"v_add_u32 v{WADDR+db}, 32768, v{WADDR+db}")
    k.e("s_lshl_b32 s30, s5, 12")
    k.e("s_lshl_b32 s28, s3, 19")
    k.e("s_add_u32 s28, s28, s30")
    k.e("s_mov_b32 s29, s28")
    k.e(f"s_mov_b32 s32, 0x{THR:x}")
    k.e("s_lshl_b32 s33, s3, 8")
    k.e("s_lshl_b32 s6, s5, 17")
    k.e("s_add_u32 s33, s33, s6")
    k.e("s_lshl_b32 s37, s5, 13")
    k.e("s_lshl_b32 s6, s4, 8")
    k.e("s_lshl_b32 s7, s5, 6")
    k.e("s_add_u32 s6, s6, s7")
    k.e("s_mul_i32 s34, s6, 1152")
    k.e("s_lshl_b32 s35, s6, 8")
    k.e("s_lshl_b32 s7, s3, 19")
    k.e("s_add_u32 s35, s35, s7")
    k.dbg_init(dbg)
    k.srd_finish()
    stamp = k.stamp
    stamp()
    vm = VM()
    QST = 49152
    def q_dma(st):
        b = (st % 3) * QST
        out = []
        for hh in range(2):
            out.append(f"s_add_u32 m0, s37, {b + 4096*hh}\n    s_nop 0")
            for c in range(4):
                out.append(f"buffer_load_dwordx4 v{HDMA+c}, s[20:23], {'s34' if hh == 0 else 's38'} offen offset:{1024*c} lds")
        out.append(f"s_add_u32 m0, s30, {b + 32768}\n    s_nop 0")
        for c in range(4):
            out.append(f"buffer_load_dwordx4 v{WQD+c}, s[16:19], s33 offen offset:{1024*c} lds")
        out.append("s_add_u32 s34, s34, 128")
        out.append("s_add_u32 s38, s38, 128")
        out.append(f"s_add_u32 s33, s33, {64*8192}")
        return out
    def emit_vm(ins, tag):
        k.e(ins)
        if ins.startswith("buffer"): vm.issue(tag)
    def kv_dma(which, slot, emit):
        out = []
        if which == 'K':
            out.append(f"s_add_u32 m0, s30, {slot*16384}\n    s_nop 0")
            for c in range(4):
                out.append(f"buffer_load_dwordx4 v{KDMA+c}, s[8:11], s28 offen offset:{1024*c} lds")
            out.append("s_add_u32 s28, s28, 16384")
        else:
            out.append(f"s_add_u32 m0, s30, {65536 + slot*16384}\n    s_nop 0")
            for c in range(4):
                out.append(f"buffer_load_dwordx4 v{VDMA}, s[12:15], s29 offen offset:{1024*c} lds")
            out.append("s_add_u32 s29, s29, 16384")
        if emit:
            for o in out:
                k.e(o)
                if o.startswith("buffer"): vm.issue(which)
        return out
    k.e("s_add_u32 s38, s34, 36864")
    for st in range(3):
        for ins in q_dma(st): emit_vm(ins, f"S{st}")
    ACC = 40
    NF = 9 * 16
    QPF = 5
    QBAR = 16 - QPF + 2
    def qbar_gap(st): return -1 if st == 0 else (st-1)*16 + QBAR - 1
    issue = {}
    for F in range(NF):
        issue.setdefault(max(F - QPF, qbar_gap(F // 16)), []).append(('W', F))
    for st in range(9):
        for ks in range(4):
            issue.setdefault(max(st*16 + ks*4 - 4, qbar_gap(st)), []).insert(0, ('H', st*4+ks))
    dsq = []; cur = [0]
    def set_stage(st):
        if cur[0] != st:
            d = ((st % 3) - (cur[0] % 3)) * QST
            for r in list(range(HADDR, HADDR+4)) + list(range(WADDR, WADDR+4)):
                k.e(f"v_add_u32 v{r}, {d}, v{r}" if d > 0 else f"v_subrev_u32 v{r}, {-d}, v{r}")
            cur[0] = st
    def do_reads(g):
        for kind, idx in issue.get(g, []):
            if kind == 'W':
                st, ks, db = idx // 16, (idx % 16) // 4, idx % 4
                set_stage(st)
                r = RING + 4 * (idx % 8)
                k.e(f"ds_read_b64_tr_b16 v[{r}:{r+1}], v{WADDR+db} offset:{ks*4096}")
                k.e(f"ds_read_b64_tr_b16 v[{r+2}:{r+3}], v{WADDR+db} offset:{ks*4096+1024}")
                dsq.extend([('W', idx)] * 2)
            else:
                st, ks = idx // 4, idx % 4
                set_stage(st)
                for q in range(2):
                    r = HR + 8 * (idx % 2) + 4 * q
                    k.e(f"ds_read_b128 v[{r}:{r+3}], v{HADDR+ks} offset:{4096*q}")
                    dsq.append(('H', idx))
    def need(tags):
        i = max(i for i, t in enumerate(dsq) if t in tags)
        return len(dsq) - 1 - i
    k.e(f"s_waitcnt vmcnt({vm.wait_n('S0')})")
    k.e("s_barrier")
    do_reads(-1)
    pend = []
    for F in range(NF):
        st, ks, db = F // 16, (F % 16) // 4, F % 4
        k.e(f"s_waitcnt lgkmcnt({min(15, need([('W', F), ('H', st*4+ks)]))})")
        for q in range(2):
            d = ACC + (q*4+db)*16
            k.e(mf(vr(d, 16), vr(RING + 4*(F % 8), 4), vr(HR + 8*((st*4+ks) % 2) + 4*q, 4), "0" if (st == 0 and ks == 0) else vr(d, 16)))
            if q == 0:
                if F % 16 == QBAR - 1:
                    if st + 1 < 9:
                        k.e(f"s_waitcnt vmcnt({vm.wait_n(f'S{st+1}')}) lgkmcnt(0)")
                    else:
                        k.e("s_waitcnt lgkmcnt(0)")
                    k.e("s_barrier")
                    if st + 3 < 9: pend = [(i, f"S{st+3}") for i in q_dma(st + 3)]
                    elif st == 6: pend = [(i, 'K') for t in range(3) for i in kv_dma('K', t, False)]
                    elif st == 7: pend = [(i, 'V') for t in range(2) for i in kv_dma('V', t, False)]
                do_reads(F)
            for _ in range(2):
                if pend:
                    i, t = pend.pop(0); emit_vm(i, t)
            if 2*F + q < 128: k.e(f"v_accvgpr_write_b32 a{2*F+q}, 0")
    assert not pend
    stamp()
    k.e("s_nop 15")
    k.e(f"s_mov_b32 s6, 0x{QSCALE:x}")
    for q in range(2):
        for db in range(4):
            for t in range(2):
                b = ACC + (q*4+db)*16 + 8*t
                for j in range(8):
                    k.e(f"v_mul_f32 v{b+j}, s6, v{b+j}")
                for j in range(4):
                    k.e(f"v_cvt_pk_bf16_f32 v{XT+j}, v{b+2*j}, v{b+2*j+1}")
                k.e("s_nop 1")
                k.e(f"v_permlane32_swap_b32 v{XT}, v{XT+2}")
                k.e(f"v_permlane32_swap_b32 v{XT+1}, v{XT+3}")
                k.e("s_nop 1")
                for j in range(4):
                    k.e(f"v_accvgpr_write_b32 a{QA + (q*8 + 2*db + t)*4 + j}, v{XT+j}")
    k.e(f"v_mov_b32 v{LSUM}, 0"); k.e(f"v_mov_b32 v{LSUM+1}, 0")
    k.e("s_waitcnt vmcnt(0)")
    k.e("s_barrier")
    k.e("s_lshl_b32 s6, s2, 2")
    k.e("s_add_u32 s6, s6, s5")
    k.e("s_mul_i32 s7, s6, 4608")
    k.e("s_mul_i32 s6, s6, 5184")
    k.e(f"v_lshlrev_b32 v4, 7, v{vLANE}")
    emit_vm("buffer_load_dword v5, v4, s[40:43], s7 offen", "pf")
    emit_vm("buffer_load_dword v5, v4, s[44:47], s6 offen", "pf")
    emit_vm("buffer_load_dword v5, v4, s[48:51], s6 offen", "pf")
    stamp()
    for ks in range(8):
        r = RING + 4 * ks
        k.e(f"ds_read_b128 v[{r}:{r+3}], v{KADDR+ks}")
    for ks in range(8):
        k.e(f"s_waitcnt lgkmcnt({7-ks})")
        r = RING + 4 * ks
        for q in range(2):
            d = SA_ + 16*q
            k.e(mf(vr(d, 16), vr(r, 4), ar(QA + (q*8+ks)*4, 4), "0" if ks == 0 else vr(d, 16)))
    k.e("s_nop 15")
    for q in range(2):
        rowmax(k, SA_, q, XT, XT+1)
        for i in range(16):
            k.e(f"v_sub_f32 v{NEGM+16*q+i}, 0, v{XT}")
            k.e(f"v_sub_f32 v{SA_+16*q+i}, v{SA_+16*q+i}, v{XT}")
    def frag_reads(it, f):
        sl = it % 4; sl1 = (it + 1) % 4
        r = RING + 4 * (f % 8)
        ph, j = f // 8, f % 8
        if ph == 0:
            return [f"ds_read_b128 v[{r}:{r+3}], v{KADDR+j} offset:{sl*16384 + 8192}"]
        if ph == 2:
            return [f"ds_read_b128 v[{r}:{r+3}], v{KADDR+j} offset:{sl1*16384}"]
        kk, db = j // 4, j % 4
        off = sl * 16384 + (8192 if ph == 3 else 0) + kk * 4096
        return [f"ds_read_b64_tr_b16 v[{r}:{r+1}], v{VADDR+db} offset:{off}",
                f"ds_read_b64_tr_b16 v[{r+2}:{r+3}], v{VADDR+db} offset:{off+2048}"]
    def nreads(f):
        return 1 if (f % 32) // 8 in (0, 2) else 2
    def mfma_of(t):
        f, q = t // 2, t % 2
        r = RING + 4 * (f % 8)
        ph, j = f // 8, f % 8
        if ph in (0, 2):
            S = SB_ if ph == 0 else SA_
            d = S + 16*q
            c = vr(NEGM + 16*q, 16) if j == 0 else vr(d, 16)
            return mf(vr(d, 16), vr(r, 4), ar(QA + (q*8+j)*4, 4), c)
        P = PA_ if ph == 1 else PB_
        kk, db = j // 4, j % 4
        o = (q*4+db)*16
        return mf(ar(o, 16), vr(r, 4), vr(P + 8*q + 4*kk, 4), ar(o, 16))
    smA = softmax_instrs(SA_, PA_)
    smB = softmax_instrs(SB_, PB_)
    winA = list(range(51, 64)) + list(range(0, 14))
    winB = list(range(19, 46))
    def distribute(ins, win):
        tot = sum(c for _, c in ins)
        res = {g: [] for g in win}
        acc = 0; i = 0
        for n, g in enumerate(win):
            target = tot * (n + 1) / len(win)
            while i < len(ins) and (acc + ins[i][1] / 2 <= target or n == len(win) - 1):
                res[g].append(ins[i][0]); acc += ins[i][1]; i += 1
        return res
    dA = distribute(smA, winA); dB = distribute(smB, winB)
    for g in range(51, 64):
        for ins in dA[g]: k.e(ins)
    for f in range(PF):
        for ins in frag_reads(0, f): k.e(ins)
    k.e("s_mov_b32 s31, 8")
    stamp()
    rares = []
    k.e(".p2align 6")
    k.label("attn_loop")
    for it in range(4):
        dmaK = kv_dma('K', (it + 3) % 4, False)
        dmaV = kv_dma('V', (it + 2) % 4, False)
        dma_at = {}
        seq = dmaK + dmaV
        slots = [1, 3, 5, 7, 9, 15, 17, 17, 47, 49, 49, 49]
        for s_, ins in zip(slots, seq):
            dma_at.setdefault(s_, []).append(ins)
        for t in range(64):
            f, q = t // 2, t % 2
            if t == 0:
                k.e("s_waitcnt vmcnt(8)")
                k.e("s_barrier")
            if q == 0:
                n = sum(nreads(f + x) for x in range(1, PF))
                k.e(f"s_waitcnt lgkmcnt({n})")
            k.e(mfma_of(t))
            if q == 0:
                f2 = f + PF
                for ins in frag_reads(it + f2 // 32, f2 % 32): k.e(ins)
            for ins in dma_at.get(t, []): k.e(ins)
            for ins in dA.get(t, []): k.e(ins)
            for ins in dB.get(t, []): k.e(ins)
            if t in (14, 46):
                lab = k.newlabel("rare"); ret = k.newlabel("ret")
                k.e(f"v_max_f32 v{TMP+4}, v{LT}, v{LT+1}")
                k.e(f"v_cmp_lt_f32 vcc, s32, v{TMP+4}")
                k.e(f"s_cbranch_vccnz {lab}")
                k.label(ret)
                k.e(f"v_add_f32 v{LSUM}, v{LSUM}, v{LT}")
                k.e(f"v_add_f32 v{LSUM+1}, v{LSUM+1}, v{LT+1}")
                if t == 14: rares.append((lab, ret, SA_, SB_, PA_))
                else: rares.append((lab, ret, SB_, SA_, PB_))
    k.e("s_sub_u32 s31, s31, 1")
    k.e("s_cmp_lg_u32 s31, 0")
    k.e("s_cbranch_scc1 attn_loop")
    stamp()
    k.e("s_nop 15")
    k.e("s_waitcnt vmcnt(0) lgkmcnt(0)")
    for q in range(2):
        l = LSUM + q
        k.e(f"v_mov_b32 v{XT}, v{l}")
        k.e("s_nop 1")
        k.e(f"v_permlane32_swap_b32 v{XT}, v{l}")
        k.e("s_nop 1")
        k.e(f"v_add_f32 v{l}, v{l}, v{XT}")
        k.e(f"v_rcp_f32 v{l}, v{l}")
        k.e("s_nop 0")
    k.e("s_barrier")
    k.e("s_mul_i32 s6, s5, 17408")
    k.e(f"v_mul_u32_u24 v4, 272, v{vL31}")
    k.e(f"v_lshl_add_u32 v4, v{vHALF}, 4, v4")
    k.e("v_add_u32 v4, s6, v4")
    k.e(f"v_lshrrev_b32 v5, 4, v{vLANE}")
    k.e(f"v_and_b32 v6, 15, v{vLANE}")
    k.e("v_lshlrev_b32 v6, 4, v6")
    k.e("v_mul_u32_u24 v7, 272, v5")
    k.e("v_add3_u32 v7, v7, v6, s6")
    k.e("v_lshl_add_u32 v6, v5, 8, v6")
    n = 0
    for q in range(2):
        for db in range(4):
            for gp in range(2):
                T = XT + 12 * (n % 2); n += 1
                for j in range(8):
                    k.e(f"v_accvgpr_read_b32 v{T+4+j}, a{(q*4+db)*16 + 8*gp + j}")
                for j in range(8):
                    k.e(f"v_mul_f32 v{T+4+j}, v{T+4+j}, v{LSUM+q}")
                for j in range(4):
                    k.e(f"v_cvt_pk_bf16_f32 v{T+j}, v{T+4+2*j}, v{T+5+2*j}")
                k.e("s_nop 1")
                k.e(f"v_permlane32_swap_b32 v{T}, v{T+2}")
                k.e(f"v_permlane32_swap_b32 v{T+1}, v{T+3}")
                k.e(f"ds_write_b128 v4, v[{T}:{T+3}] offset:{32*272*q + 64*db + 32*gp}")
    k.e("s_waitcnt lgkmcnt(0)")
    for j in range(16):
        k.e(f"ds_read_b128 v[{40+4*j}:{43+4*j}], v7 offset:{4*272*j}")
    for j in range(16):
        k.e(f"s_waitcnt lgkmcnt({15-j})")
        k.e(f"buffer_store_dwordx4 v[{40+4*j}:{43+4*j}], v6, s[24:27], s35 offen offset:{1024*(j%4)}")
        if j % 4 == 3: k.e("s_add_u32 s35, s35, 4096")
    k.dbg_flush("attn_done")
    k.tl_end()
    k.label("attn_done")
    k.e("s_endpgm")
    for r in rares:
        rare_path(k, *r)
    return k
```

```python
import layout as L

KA = dict(x=0, k=8, v=16, wq=24, wo=32, bx=40, w1=48, w2=56, c=64, wmod=72, out=80, dbg=88, ws=96)

class Kern:
    def __init__(self, name, grid, block, lds, nvgpr=256, nagpr=0, nsgpr=102):
        self.name = name; self.grid = grid; self.block = block; self.lds = lds
        self.nvgpr = nvgpr; self.nagpr = nagpr; self.nsgpr = nsgpr
        self.lines = []
        self.uid = 0
    def e(self, s):
        self.lines.append("    " + s)
    def c(self, s):
        self.lines.append("    ; " + s)
    def label(self, l):
        self.lines.append(l + ":")
    def newlabel(self, p="L"):
        self.uid += 1
        return f"{self.name}_{p}{self.uid}"
    def srd(self, sd, karg, size, off=0):
        self.e(f"s_load_dwordx2 s[{sd}:{sd+1}], s[0:1], {KA[karg]}")
        self.pend = getattr(self, 'pend', []) + [(sd, size, off)]
    def srd_finish(self):
        self.e("s_waitcnt lgkmcnt(0)")
        for sd, size, off in self.pend:
            if off:
                self.e(f"s_add_u32 s{sd}, s{sd}, 0x{off:x}")
                self.e(f"s_addc_u32 s{sd+1}, s{sd+1}, 0")
            self.e(f"s_and_b32 s{sd+1}, s{sd+1}, 0xffff")
            self.e(f"s_mov_b32 s{sd+2}, 0x{size:x}")
            self.e(f"s_mov_b32 s{sd+3}, 0x00020000")
        self.pend = []
    TLIDX = [0]
    def tl_start(self):
        import os
        self.tl = os.environ.get('TL','0') == '1'
        if self.tl:
            self.tli = Kern.TLIDX[0]; Kern.TLIDX[0] += 1
            self.e("s_memrealtime s[94:95]")
            self.e("s_load_dwordx2 s[96:97], s[0:1], 96")
    def tl_end(self):
        if self.tl:
            self.e("s_waitcnt vmcnt(0) lgkmcnt(0)")
            self.e("s_memrealtime s[100:101]")
            self.e(f"s_add_u32 s96, s96, 0x{0xF000000 + self.tli*16384:x}")
            self.e("s_addc_u32 s97, s97, 0")
            self.e("s_and_b32 s97, s97, 0xffff")
            self.e("s_mov_b32 s98, 16384")
            self.e("s_mov_b32 s99, 0x20000")
            self.e("s_waitcnt lgkmcnt(0)")
            self.e("s_mov_b64 exec, 1")
            self.e("v_mov_b32 v0, s94")
            self.e("v_mov_b32 v1, s100")
            self.e("s_lshl_b32 s94, s2, 3")
            self.e("v_mov_b32 v2, s94")
            self.e("buffer_store_dwordx2 v[0:1], v2, s[96:99], 0 offen")
    def dbg_init(self, on):
        self.dbg = on; self.nst = 0
        if on: self.srd(60, 'dbg', 256)
    def stamp(self):
        if getattr(self, 'dbg', False):
            if self.nst == 0: self.e("s_memrealtime s[90:91]")
            self.e(f"s_memtime s[{64+2*self.nst}:{65+2*self.nst}]")
            self.nst += 1
    def dbg_flush(self, done, wg=77, wavereg='s5'):
        if getattr(self, 'dbg', False):
            self.e("s_waitcnt vmcnt(0)")
            self.stamp()
            self.e("s_memrealtime s[92:93]")
            self.e("s_waitcnt lgkmcnt(0)")
            self.e(f"s_cmp_lg_u32 s2, {wg}")
            self.e(f"s_cbranch_scc1 {done}")
            self.e(f"s_cmp_lg_u32 {wavereg}, 0")
            self.e(f"s_cbranch_scc1 {done}")
            self.e("v_mov_b32 v5, 0")
            for i in range(self.nst):
                self.e(f"s_sub_u32 s6, s{64+2*i}, s64")
                self.e("v_mov_b32 v4, s6")
                self.e(f"buffer_store_dword v4, v5, s[60:63], 0 offen offset:{4*i}")
            self.e("s_sub_u32 s6, s92, s90")
            self.e("v_mov_b32 v4, s6")
            self.e("buffer_store_dword v4, v5, s[60:63], 0 offen offset:28")
    def launch_line(self):
        g = self.grid; b = self.block
        return f"; @launch kernel={self.name} grid=({g[0]},{g[1]},{g[2]}) block=({b[0]},{b[1]},{b[2]}) lds={self.lds}"
    def text(self):
        acc = (self.nvgpr + 3) // 4 * 4
        nfv = acc + self.nagpr if self.nagpr else self.nvgpr
        head = [f".globl {self.name}", ".p2align 8", f".type {self.name},@function", f"{self.name}:"]
        return "\n".join(head + self.lines) + "\n"
    def desc(self):
        acc = (self.nvgpr + 3) // 4 * 4
        nfv = acc + self.nagpr if self.nagpr else self.nvgpr
        return f""".p2align 6
.amdhsa_kernel {self.name}
  .amdhsa_next_free_vgpr {nfv}
  .amdhsa_next_free_sgpr {self.nsgpr}
  .amdhsa_accum_offset {acc}
  .amdhsa_group_segment_fixed_size 0
  .amdhsa_kernarg_size 104
  .amdhsa_user_sgpr_count 2
  .amdhsa_user_sgpr_kernarg_segment_ptr 1
  .amdhsa_system_sgpr_workgroup_id_x 1
  .amdhsa_float_denorm_mode_32 3
  .amdhsa_float_denorm_mode_16_64 3
.end_amdhsa_kernel
"""

def wave_sum(k, v, s0):
    for m in ("quad_perm:[1,0,3,2]", "quad_perm:[2,3,0,1]", "row_half_mirror", "row_mirror"):
        k.e("s_nop 1")
        k.e(f"v_add_f32_dpp v{v}, v{v}, v{v} {m} row_mask:0xf bank_mask:0xf")
    k.e("s_nop 1")
    for i in range(4):
        k.e(f"v_readlane_b32 s{s0+i}, v{v}, {16*i}")
    k.e("s_nop 1")
    k.e(f"v_mov_b32 v{v}, s{s0}")
    for i in range(1, 4):
        k.e(f"v_add_f32 v{v}, s{s0+i}, v{v}")

def bf16r(k, vd, vs):
    k.e(f"v_cvt_pk_bf16_f32 v{vd}, v{vs}, v{vs}")
    k.e(f"v_lshlrev_b32 v{vd}, 16, v{vd}")

def bf16r2(k, va, vb, vt):
    k.e(f"v_cvt_pk_bf16_f32 v{vt}, v{va}, v{vb}")
    k.e(f"v_lshlrev_b32 v{va}, 16, v{vt}")
    k.e(f"v_and_b32 v{vb}, 0xffff0000, v{vt}")

def assemble(kerns, order, header):
    out = [header.rstrip("\n")]
    for kn in order:
        out.append(kn.launch_line())
    out.append('.amdgcn_target "amdgcn-amd-amdhsa--gfx950"')
    out.append(".text")
    seen = []
    for kn in kerns:
        out.append(kn.text())
    out.append('.section .rodata,"a"')
    for kn in kerns:
        out.append(kn.desc())
    return "\n".join(out)
```

```python
import os
from gen_common import *
from gen_attn import VM, mf, vr, ar

NLOG2E = 0xbfb8aa3b
NSPLIT = 4

def silu_group(k, b, T, waddr, off):
    for j in range(4):
        bf16r2(k, b+2*j, b+2*j+1, T+j)
    for j in range(8):
        k.e(f"v_mul_f32 v{T+4+j}, s25, v{b+j}")
    for j in range(8):
        k.e(f"v_exp_f32 v{T+4+j}, v{T+4+j}")
    for j in range(8):
        k.e(f"v_add_f32 v{T+4+j}, 1.0, v{T+4+j}")
    for j in range(8):
        k.e(f"v_rcp_f32 v{T+4+j}, v{T+4+j}")
    for j in range(8):
        k.e(f"v_mul_f32 v{b+j}, v{b+j}, v{T+4+j}")
    for j in range(4):
        k.e(f"v_cvt_pk_bf16_f32 v{T+j}, v{b+2*j}, v{b+2*j+1}")
    k.e("s_nop 1")
    k.e(f"v_permlane32_swap_b32 v{T}, v{T+2}")
    k.e(f"v_permlane32_swap_b32 v{T+1}, v{T+3}")
    k.e(f"ds_write_b128 v{waddr}, v[{T}:{T+3}] offset:{off}")

RAW = 81920
def gen_gemm(name, xk, xoff, xsize, ldx, wk, wsize, ldw, nstage, mode, xbs=0):
    part = mode == 'part'
    TM = 64 if part else 128
    XB = TM * 128
    STAGE = XB + 36864
    KS = [0, 1] if part else [0, 1, 2, 3]
    MPS = 9 * len(KS)
    PFD = 8; NR = 10
    k = Kern(name, (256,1,1), (512,1,1), 3*STAGE if not part else max(3*STAGE, 64*1168), nvgpr=256, nsgpr=102)
    k.tl_start()
    ACC = 100; WR = 32; XR = 80
    XA = 4; WA = 8; XD = 10; WD = 14
    done = f"{name}_done"
    k.e("s_cmp_ge_u32 s2, 256")
    k.e(f"s_cbranch_scc1 {done}")
    k.srd(8, xk, xsize, xoff); k.srd(12, wk, wsize)
    if part: k.srd(16, 'ws', NSPLIT*2048*576*4, L.PART)
    else: k.srd(16, 'ws', 2048*4608*2, L.U)
    k.dbg_init(os.environ.get('DBG','0')=='1')
    k.e("v_lshrrev_b32 v4, 6, v0")
    k.e("v_and_b32 v1, 63, v0")
    k.e("v_readfirstlane_b32 s5, v4")
    k.e("v_and_b32 v2, 31, v0")
    k.e("v_lshrrev_b32 v3, 5, v1")
    k.e("s_and_b32 s6, s2, 7")
    k.e("s_lshr_b32 s7, s2, 3")
    if part:
        k.e("s_and_b32 s3, s6, 1"); k.e("s_lshl_b32 s3, s3, 4"); k.e("s_and_b32 s24, s7, 15"); k.e("s_add_u32 s3, s3, s24")
        k.e("s_lshr_b32 s4, s7, 4")
        k.e("s_lshr_b32 s6, s6, 1")
        k.e(f"s_mul_i32 s23, s6, {nstage*64}")
    else:
        k.e("s_and_b32 s3, s6, 1"); k.e("s_lshl_b32 s3, s3, 3"); k.e("s_and_b32 s24, s7, 7"); k.e("s_add_u32 s3, s3, s24")
        k.e("s_lshr_b32 s4, s6, 1"); k.e("s_lshl_b32 s4, s4, 2"); k.e("s_lshr_b32 s24, s7, 3"); k.e("s_add_u32 s4, s4, s24")
        k.e("s_mov_b32 s23, 0")
    k.e(f"s_mul_i32 s24, s3, {TM}")
    if part:
        k.e("s_mul_i32 s22, s24, 2304"); k.e(f"s_mul_i32 s25, s6, {2048*2304}"); k.e("s_add_u32 s22, s22, s25")
        k.e("s_mul_i32 s25, s4, 1152"); k.e("s_add_u32 s22, s22, s25")
    else:
        k.e("s_lshl_b32 s22, s24, 7"); k.e("s_mul_i32 s30, s4, 36")
    k.srd_finish()
    k.stamp()
    k.e("s_cmp_ge_u32 s5, 4")
    k.e(f"s_cbranch_scc1 {name}_loader")
    if part:
        k.e("s_and_b32 s26, s5, 1")
        k.e("s_lshr_b32 s27, s5, 1")
        k.e("s_lshl_b32 s26, s26, 12")
        k.e("s_lshl_b32 s28, s27, 2")
        k.e(f"s_mul_i32 s27, s27, {2*9216}")
    else:
        k.e("s_lshl_b32 s26, s5, 12")
        k.e("s_mov_b32 s28, 0"); k.e("s_mov_b32 s27, 0")
    k.e("v_bfe_u32 v28, v2, 1, 3")
    k.e("v_lshlrev_b32 v29, 7, v2")
    k.e("v_add_u32 v29, s26, v29")
    k.e("v_add_u32 v31, s28, v3")
    for i in range(len(KS)):
        k.e(f"v_add_u32 v30, {2*i}, v31")
        k.e("v_xor_b32 v30, v30, v28")
        k.e(f"v_lshl_add_u32 v{XA+i}, v30, 4, v29")
    k.e("v_bfe_u32 v28, v1, 2, 2")
    k.e("v_lshl_add_u32 v28, v3, 3, v28")
    k.e("v_mul_u32_u24 v28, 576, v28")
    k.e("v_bfe_u32 v29, v1, 4, 1")
    k.e("v_lshl_add_u32 v28, v29, 5, v28")
    k.e("v_and_b32 v29, 3, v1")
    k.e("v_lshl_add_u32 v28, v29, 3, v28")
    k.e(f"v_add_u32 v{WA}, s27, v28")
    NM = nstage * MPS
    BAR = MPS - PFD + 3
    def bar_gap(s): return -1 if s == 0 else (s-1)*MPS + BAR - 1
    issue = {}
    for F in range(NM):
        issue.setdefault(max(F - PFD, bar_gap(F // MPS)), []).append(('W', F))
    nk = len(KS)
    for s in range(nstage):
        for i in range(nk):
            issue.setdefault(max(s*MPS + i*9 - PFD - 1, bar_gap(s)), []).insert(0, ('X', s*nk+i))
    dsq = []; cur = [0]
    def set_stage(s):
        if cur[0] != s:
            d = ((s % 3) - (cur[0] % 3)) * STAGE
            for r in list(range(XA, XA+nk)) + [WA]:
                k.e(f"v_add_u32 v{r}, {d}, v{r}" if d > 0 else f"v_subrev_u32 v{r}, {-d}, v{r}")
            cur[0] = s
    def do_reads(g):
        for kind, idx in issue.get(g, []):
            if kind == 'W':
                s, rem = idx // MPS, idx % MPS
                i, nb = rem // 9, rem % 9
                set_stage(s)
                r = WR + 4 * (idx % NR)
                off = XB + nb*64 + i*9216
                k.e(f"ds_read_b64_tr_b16 v[{r}:{r+1}], v{WA} offset:{off}")
                k.e(f"ds_read_b64_tr_b16 v[{r+2}:{r+3}], v{WA} offset:{off+2304}")
                dsq.extend([('W', idx)] * 2)
            else:
                s, i = idx // nk, idx % nk
                set_stage(s)
                r = XR + 4 * (idx % 4)
                k.e(f"ds_read_b128 v[{r}:{r+3}], v{XA+i}")
                dsq.append(('X', idx))
    def need(tags):
        i = max(i for i, t in enumerate(dsq) if t in tags)
        return len(dsq) - 1 - i
    k.e("s_barrier")
    k.stamp()
    do_reads(-1)
    for F in range(NM):
        s, rem = F // MPS, F % MPS
        i, nb = rem // 9, rem % 9
        k.e(f"s_waitcnt lgkmcnt({min(need([('W', F), ('X', s*nk+i)]), 15)})")
        d = ACC + 16*nb
        k.e(mf(vr(d, 16), vr(WR + 4*(F % NR), 4), vr(XR + 4*((s*nk+i) % 4), 4), "0" if F < 9 else vr(d, 16)))
        if rem == BAR - 1 and s + 1 < nstage:
            k.e("s_waitcnt lgkmcnt(0)")
            k.e("s_barrier")
        do_reads(F)
    k.stamp()
    k.e("s_nop 15")
    k.e("s_barrier")
    if part: LST = 1168
    else: LST = 592
    k.e("s_lshr_b32 s26, s26, 7")
    k.e("v_add_u32 v4, s26, v2")
    k.e(f"v_mul_u32_u24 v4, {LST}, v4")
    k.e("v_lshl_add_u32 v4, v3, 4, v4")
    if part:
        l1 = k.newlabel("wk1"); l2 = k.newlabel("wkj")
        k.e("s_cmp_lg_u32 s28, 0")
        k.e(f"s_cbranch_scc1 {l1}")
        k.e("s_barrier")
        for h in range(3):
            for i in range(12):
                idx = h*12 + i
                k.e(f"ds_read_b128 v[{WR+4*i}:{WR+4*i+3}], v4 offset:{128*(idx//4)+32*(idx%4)}")
            for i in range(12):
                idx = h*12 + i
                k.e(f"s_waitcnt lgkmcnt({11-i})")
                for j in range(4):
                    k.e(f"v_add_f32 v{ACC+4*idx+j}, v{ACC+4*idx+j}, v{WR+4*i+j}")
                k.e(f"ds_write_b128 v4, v[{ACC+4*idx}:{ACC+4*idx+3}] offset:{128*(idx//4)+32*(idx%4)}")
            k.e("s_waitcnt lgkmcnt(0)")
        k.e(f"s_branch {l2}")
        k.label(l1)
        for idx in range(36):
            k.e(f"ds_write_b128 v4, v[{ACC+4*idx}:{ACC+4*idx+3}] offset:{128*(idx//4)+32*(idx%4)}")
        k.e("s_waitcnt lgkmcnt(0)")
        k.e("s_barrier")
        k.label(l2)
    else:
        k.e(f"s_lshl_b32 s25, s5, 14")
        k.e("v_lshlrev_b32 v5, 4, v1")
        k.e("v_add_u32 v5, s25, v5")
        k.e(f"v_add_u32 v5, {RAW}, v5")
        for i in range(16):
            r = ACC + 80 + 4*i
            k.e(f"ds_write_b128 v5, v[{r}:{r+3}] offset:{1024*i}")
        k.e("s_waitcnt lgkmcnt(0)")
        k.e("s_barrier")
        k.e(f"s_mov_b32 s25, 0x{NLOG2E:x}")
        n = 0
        for nb in range(5):
            for gp in range(2):
                silu_group(k, ACC + 16*nb + 8*gp, WR + 16 * (n % 3), 4, 64*nb+32*gp); n += 1
        k.e("s_waitcnt lgkmcnt(0)")
    k.e(f"s_branch {name}_store")
    k.label(f"{name}_loader")
    k.e("s_sub_u32 s5, s5, 4")
    nxc = TM // 32
    k.e(f"s_mul_i32 s25, s5, {TM//4}"); k.e("s_add_u32 s25, s25, s24")
    k.e(f"s_mul_i32 s20, s25, {ldx}")
    if xbs:
        k.e(f"s_lshr_b32 s25, s23, {(ldx//2).bit_length()-1}"); k.e(f"s_mul_i32 s25, s25, {xbs}")
    else:
        k.e("s_lshl_b32 s25, s23, 1")
    k.e("s_add_u32 s20, s20, s25")
    k.e("s_lshl_b32 s25, s5, 4"); k.e("s_add_u32 s25, s25, s23"); k.e(f"s_mul_i32 s21, s25, {ldw}")
    k.e("s_mul_i32 s25, s4, 576"); k.e("s_add_u32 s21, s21, s25")
    k.e(f"s_mul_i32 s26, s5, {nxc*1024}")
    k.e("s_mul_i32 s27, s5, 9216"); k.e(f"s_add_u32 s27, s27, {XB}")
    k.e("v_lshrrev_b32 v28, 3, v1")
    k.e("v_and_b32 v29, 7, v1")
    k.e("v_lshrrev_b32 v30, 4, v1")
    k.e(f"s_mov_b32 s25, {ldx}")
    for c in range(nxc):
        k.e(f"v_add_u32 v31, {4*(c&1)}, v30")
        k.e("v_xor_b32 v31, v31, v29")
        k.e("v_lshlrev_b32 v31, 4, v31")
        k.e(f"v_add_u32 v{XD+c}, {8*c}, v28")
        k.e(f"v_mul_lo_u32 v{XD+c}, v{XD+c}, s25")
        k.e(f"v_add_u32 v{XD+c}, v{XD+c}, v31")
        if c: k.e(f"v_subrev_u32 v{XD+c}, {1024*c}, v{XD+c}")
    for P in range(576): assert (P * 1821) >> 16 == P // 36
    k.e(f"s_mov_b32 s25, {ldw}")
    for j in range(9):
        k.e(f"v_add_u32 v28, {64*j}, v1")
        k.e("v_mul_u32_u24 v29, 1821, v28")
        k.e("v_lshrrev_b32 v29, 16, v29")
        k.e("v_mul_u32_u24 v30, 36, v29")
        k.e("v_sub_u32 v28, v28, v30")
        k.e(f"v_mul_lo_u32 v{WD+j}, v29, s25")
        k.e(f"v_lshl_add_u32 v{WD+j}, v28, 4, v{WD+j}")
        if j % 4: k.e(f"v_subrev_u32 v{WD+j}, {1024*(j%4)}, v{WD+j}")
    k.e("v_lshrrev_b32 v28, 2, v1")
    k.e("v_mul_lo_u32 v24, v28, s25")
    k.e("v_and_b32 v28, 3, v1")
    k.e("v_lshl_add_u32 v24, v28, 7, v24")
    k.e("v_and_b32 v28, 15, v1")
    k.e("v_mul_lo_u32 v25, v28, s25")
    k.e("v_add_u32 v25, 512, v25")
    k.e(f"v_and_b32 v28, {TM//4-1}, v1")
    k.e(f"s_mov_b32 s25, {ldx}")
    k.e("v_mul_lo_u32 v26, v28, s25")
    PFS = 3
    k.e(f"s_add_u32 s28, s20, {128*3}")
    k.e(f"s_add_u32 s29, s21, {64*ldw*3}")
    vm = VM()
    def pf(s):
        if s >= nstage or os.environ.get('PF','0') != '1': return
        k.e("buffer_load_dword v27, v26, s[8:11], s28 offen"); vm.issue('pf')
        k.e("buffer_load_dword v27, v24, s[12:15], s29 offen"); vm.issue('pf')
        k.e("buffer_load_dword v27, v25, s[12:15], s29 offen"); vm.issue('pf')
        k.e("s_add_u32 s28, s28, 128")
        k.e(f"s_add_u32 s29, s29, {64*ldw}")
    def dma(s):
        b = (s % 3) * STAGE
        k.e(f"s_add_u32 m0, s26, {b}"); k.e("s_nop 0")
        for c in range(nxc):
            k.e(f"buffer_load_dwordx4 v{XD+c}, s[8:11], s20 offen offset:{1024*c} lds"); vm.issue(s)
        for j in range(9):
            if j % 4 == 0:
                k.e(f"s_add_u32 m0, s27, {b + 4096*(j//4)}"); k.e("s_nop 0")
            k.e(f"buffer_load_dwordx4 v{WD+j}, s[12:15], s21 offen offset:{1024*(j%4)} lds"); vm.issue(s)
        if xbs and ((s + 1) * 128) % ldx == 0:
            k.e(f"s_add_u32 s20, s20, {xbs - ldx + 128}")
        else:
            k.e("s_add_u32 s20, s20, 128")
        k.e(f"s_add_u32 s21, s21, {64*ldw}")
    for s in range(3): dma(s)
    for s in range(3, 3 + PFS): pf(s)
    k.e(f"s_waitcnt vmcnt({vm.wait_n(0)})")
    k.e("s_barrier")
    for s in range(nstage - 1):
        k.e(f"s_waitcnt vmcnt({vm.wait_n(s+1)})")
        k.e("s_barrier")
        if s + 3 < nstage: dma(s + 3)
        pf(s + 3 + PFS)
    k.e("s_barrier")
    k.e("s_barrier")
    if not part:
        k.e(f"s_lshl_b32 s25, s5, 14")
        k.e("v_lshlrev_b32 v5, 4, v1")
        k.e("v_add_u32 v5, s25, v5")
        k.e(f"v_add_u32 v5, {RAW}, v5")
        for i in range(16):
            r = ACC + 4*i
            k.e(f"ds_read_b128 v[{r}:{r+3}], v5 offset:{1024*i}")
        k.e("s_lshl_b32 s26, s5, 5")
        k.e("v_add_u32 v4, s26, v2")
        k.e("v_mul_u32_u24 v4, 592, v4")
        k.e("v_lshl_add_u32 v4, v3, 4, v4")
        k.e(f"s_mov_b32 s25, 0x{NLOG2E:x}")
        n = 0
        for nb in range(4):
            for gp in range(2):
                if n == 0: k.e("s_waitcnt lgkmcnt(0)")
                silu_group(k, ACC + 16*nb + 8*gp, WR + 16 * (n % 3), 4, 64*(nb+5)+32*gp); n += 1
        k.e("s_waitcnt lgkmcnt(0)")
    k.e("s_add_u32 s5, s5, 4")
    k.label(f"{name}_store")
    k.e("s_barrier")
    if part: PCS, GST, MAG = 72, 2304, 911
    else: PCS, GST, MAG = 36, 128, 1821
    for P in range(576): assert (P * MAG) >> 16 == P // PCS
    RPG = 576 // PCS
    k.e(f"s_mul_i32 s25, s5, {RPG*LST}")
    k.e(f"s_mul_i32 s26, s5, {RPG*GST}")
    k.e("s_add_u32 s22, s22, s26")
    for j in range(9):
        k.e(f"v_add_u32 v28, {64*j}, v1")
        k.e(f"v_mul_u32_u24 v29, {MAG}, v28")
        k.e("v_lshrrev_b32 v29, 16, v29")
        k.e(f"v_mul_u32_u24 v30, {PCS}, v29")
        k.e("v_sub_u32 v28, v28, v30")
        if not part: k.e("v_add_u32 v31, s30, v28")
        k.e("v_lshlrev_b32 v28, 4, v28")
        k.e(f"v_mul_u32_u24 v30, {LST}, v29")
        k.e("v_add3_u32 v30, v30, v28, s25")
        k.e(f"ds_read_b128 v[{WR+4*j}:{WR+4*j+3}], v30")
        k.e(f"v_mul_u32_u24 v30, {GST}, v29")
        if part:
            k.e(f"v_add_u32 v{5+j}, v30, v28")
        else:
            k.e("v_and_b32 v28, 7, v31")
            k.e("v_lshl_add_u32 v30, v28, 4, v30")
            k.e("v_lshrrev_b32 v31, 3, v31")
            k.e(f"v_lshl_add_u32 v{5+j}, v31, 18, v30")
    for j in range(9):
        k.e(f"s_waitcnt lgkmcnt({8-j})")
        k.e(f"buffer_store_dwordx4 v[{WR+4*j}:{WR+4*j+3}], v{5+j}, s[16:19], s22 offen")
    k.dbg_flush(done)
    k.tl_end()
    k.label(done)
    k.e("s_endpgm")
    return k

def gen_one(n):
    return {
        'oproj': lambda: gen_gemm("oproj_kernel", 'ws', L.O, 2048*4096*2, 256, 'wo', 4096*576*2, 1152, 16, 'part', xbs=524288),
        'ffn1': lambda: gen_gemm("ffn1_kernel", 'ws', L.H2, 2048*576*2, 1152, 'w1', 576*4608*2, 9216, 9, 'silu'),
        'ffn2': lambda: gen_gemm("ffn2_kernel", 'ws', L.U, 2048*4608*2, 128, 'w2', 4608*576*2, 1152, 18, 'part', xbs=262144),
    }[n]()
```

```python
from gen_common import *
from gen_small import ln_body, NLOG2E

def gen_k1():
    k = Kern("k1_kernel", (236,1,1), (1024,1,1), 8192+1024, nvgpr=64, nsgpr=102)
    k.tl_start()
    done = "k1_done"
    k.e("s_cmp_ge_u32 s2, 236")
    k.e(f"s_cbranch_scc1 {done}")
    k.e("s_cmp_ge_u32 s2, 108")
    k.e("s_cbranch_scc1 k1_ln")
    k.srd(8, 'c', 576*2); k.srd(12, 'wmod', 576*3456*2); k.srd(16, 'ws', 3456*4, L.MOD); k.srd(36, 'dbg', 256)
    k.e("v_and_b32 v1, 15, v0")
    k.e("v_lshrrev_b32 v2, 4, v0")
    k.e("v_mul_u32_u24 v3, 9, v2")
    k.e("v_lshlrev_b32 v4, 1, v3")
    k.e("s_mov_b32 s20, 6912")
    k.e("v_mul_lo_u32 v5, v3, s20")
    k.e("s_lshl_b32 s3, s2, 6")
    k.e("v_lshl_add_u32 v5, v1, 2, v5")
    k.e("v_add_u32 v5, s3, v5")
    for i in range(9):
        k.e(f"s_mov_b32 s{21+i}, {6912*i}")
    k.srd_finish()
    for i in range(9):
        k.e(f"buffer_load_ushort v{10+i}, v4, s[8:11], 0 offen offset:{2*i}")
    for i in range(9):
        k.e(f"buffer_load_dword v{20+i}, v5, s[12:15], s{21+i} offen")
    k.e("s_waitcnt vmcnt(9)")
    k.e(f"s_mov_b32 s30, 0x{NLOG2E:x}")
    for i in range(9):
        k.e(f"v_lshlrev_b32 v{10+i}, 16, v{10+i}")
        k.e(f"v_mul_f32 v30, s30, v{10+i}")
        k.e("v_exp_f32 v30, v30")
        k.e("s_nop 0")
        k.e("v_add_f32 v30, 1.0, v30")
        k.e("v_rcp_f32 v30, v30")
        k.e("s_nop 0")
        k.e(f"v_mul_f32 v{10+i}, v{10+i}, v30")
        bf16r(k, 10+i, 10+i)
    k.e("v_mov_b32 v32, 0"); k.e("v_mov_b32 v33, 0")
    k.e("s_waitcnt vmcnt(0)")
    for i in range(9):
        k.e(f"v_lshlrev_b32 v34, 16, v{20+i}")
        k.e(f"v_and_b32 v35, 0xffff0000, v{20+i}")
        k.e(f"v_fmac_f32 v32, v{10+i}, v34")
        k.e(f"v_fmac_f32 v33, v{10+i}, v35")
    k.e("v_lshlrev_b32 v6, 7, v2")
    k.e("v_lshl_add_u32 v6, v1, 3, v6")
    k.e("ds_write_b64 v6, v[32:33]")
    k.e("s_waitcnt lgkmcnt(0)")
    k.e("s_barrier")
    k.e("v_cmp_gt_u32 vcc, 256, v0")
    k.e("s_and_saveexec_b64 s[32:33], vcc")
    k.e("s_cbranch_execz k1_skip1")
    k.e("v_and_b32 v7, 31, v0")
    k.e("v_lshrrev_b32 v8, 5, v0")
    k.e("v_lshlrev_b32 v9, 10, v8")
    k.e("v_lshl_add_u32 v9, v7, 2, v9")
    for i in range(8):
        k.e(f"ds_read_b32 v{20+i}, v9 offset:{128*i}")
    k.e("s_waitcnt lgkmcnt(0)")
    for i in range(1, 8):
        k.e(f"v_add_f32 v20, v20, v{20+i}")
    k.e("v_lshlrev_b32 v9, 2, v0")
    k.e("ds_write_b32 v9, v20 offset:8192")
    k.e("s_waitcnt lgkmcnt(0)")
    k.label("k1_skip1")
    k.e("s_mov_b64 exec, s[32:33]")
    k.e("s_barrier")
    k.e("v_cmp_gt_u32 vcc, 32, v0")
    k.e("s_and_saveexec_b64 s[32:33], vcc")
    k.e(f"s_cbranch_execz {done}")
    k.e("v_lshlrev_b32 v9, 2, v0")
    for i in range(8):
        k.e(f"ds_read_b32 v{20+i}, v9 offset:{8192+128*i}")
    k.e("s_waitcnt lgkmcnt(0)")
    for i in range(1, 8):
        k.e(f"v_add_f32 v20, v20, v{20+i}")
    bf16r(k, 20, 20)
    k.e("s_lshl_b32 s3, s2, 7")
    k.e("v_add_u32 v9, s3, v9")
    k.e("buffer_store_dword v20, v9, s[16:19], 0 offen sc1")
    k.e("s_cmp_ge_u32 s2, 36")
    k.e(f"s_cbranch_scc1 k1_end")
    k.e("s_waitcnt vmcnt(0)")
    k.e("s_mov_b64 exec, 1")
    k.e("v_mov_b32 v10, 1")
    k.e("v_mov_b32 v11, 0")
    k.e("buffer_atomic_add v10, v11, s[36:39], 0 offen sc1")
    k.e("s_branch k1_end")
    k.label("k1_ln")
    k.srd(8, 'x', 2048*576*2); k.srd(12, 'ws', 3456*4, L.MOD); k.srd(16, 'ws', 2048*576*2, L.H1); k.srd(36, 'dbg', 256)
    k.e("v_and_b32 v1, 63, v0")
    k.e("v_lshrrev_b32 v2, 6, v0")
    k.e("s_sub_u32 s3, s2, 108")
    k.e("v_readfirstlane_b32 s6, v2")
    k.e("s_lshl_b32 s3, s3, 4")
    k.e("v_add_u32 v2, s3, v2")
    k.e("s_movk_i32 s4, 1152")
    k.e("v_mul_lo_u32 v2, v2, s4")
    k.e("v_lshl_add_u32 v2, v1, 2, v2")
    k.e("v_lshlrev_b32 v3, 3, v1")
    k.e("v_cmp_gt_u32 s[20:21], 32, v1")
    k.e("v_mov_b32 v8, 0")
    k.e("s_movk_i32 s5, 2304")
    k.srd_finish()
    for j in range(4):
        k.e(f"buffer_load_dword v{4+j}, v2, s[8:11], 0 offen offset:{256*j}")
    k.e("s_mov_b64 s[22:23], exec")
    k.e("s_mov_b64 exec, s[20:21]")
    k.e("buffer_load_dword v8, v2, s[8:11], 0 offen offset:1024")
    k.e("s_mov_b64 exec, s[22:23]")
    k.e("s_cmp_lg_u32 s6, 0")
    k.e("s_cbranch_scc1 k1_nopoll")
    k.e("v_mov_b32 v9, 0")
    k.e("s_mov_b32 s7, 0x40000")
    k.label("k1_poll")
    k.e("buffer_load_dword v50, v9, s[36:39], 0 offen sc1")
    k.e("s_waitcnt vmcnt(0)")
    k.e("v_readfirstlane_b32 s24, v50")
    k.e("s_cmp_ge_u32 s24, 36")
    k.e("s_cbranch_scc1 k1_nopoll")
    k.e("s_sleep 2")
    k.e("s_sub_u32 s7, s7, 1")
    k.e("s_cmp_lg_u32 s7, 0")
    k.e("s_cbranch_scc1 k1_poll")
    k.label("k1_nopoll")
    k.e("s_barrier")
    for j in range(4):
        k.e(f"buffer_load_dwordx2 v[{20+2*j}:{21+2*j}], v3, s[12:15], s5 offen offset:{512*j} sc1")
        k.e(f"buffer_load_dwordx2 v[{30+2*j}:{31+2*j}], v3, s[12:15], 0 offen offset:{512*j} sc1")
    k.e("s_mov_b64 exec, s[20:21]")
    k.e(f"buffer_load_dwordx2 v[28:29], v3, s[12:15], s5 offen offset:2048 sc1")
    k.e(f"buffer_load_dwordx2 v[38:39], v3, s[12:15], 0 offen offset:2048 sc1")
    k.e("s_mov_b64 exec, s[22:23]")
    k.e("s_waitcnt vmcnt(10)")
    for j in range(5):
        k.e(f"v_lshlrev_b32 v{10+2*j}, 16, v{4+j}")
        k.e(f"v_and_b32 v{11+2*j}, 0xffff0000, v{4+j}")
    ln_body(k, 10, 20, 30, 40, 48, 20, wait_mod=True)
    for j in range(4):
        k.e(f"buffer_store_dword v{40+j}, v2, s[16:19], 0 offen offset:{256*j}")
    k.e("s_mov_b64 exec, s[20:21]")
    k.e("buffer_store_dword v44, v2, s[16:19], 0 offen offset:1024")
    k.label("k1_end")
    k.tl_end()
    k.label(done)
    k.e("s_endpgm")
    return k
```

```python
from gen_common import *

LOG2E = 0x3fb8aa3b
NLOG2E = 0xbfb8aa3b

def gen_mod():
    k = Kern("mod_kernel", (108,1,1), (1024,1,1), 8192+1024, nvgpr=40, nsgpr=102)
    k.tl_start()
    done = "mod_done"
    k.e("s_cmp_ge_u32 s2, 108")
    k.e(f"s_cbranch_scc1 {done}")
    k.srd(8, 'c', 576*2); k.srd(12, 'wmod', 576*3456*2); k.srd(16, 'ws', 3456*4, L.MOD)
    k.e("v_and_b32 v1, 15, v0")
    k.e("v_lshrrev_b32 v2, 4, v0")
    k.e("v_mul_u32_u24 v3, 9, v2")
    k.e("v_lshlrev_b32 v4, 1, v3")
    k.e("s_mov_b32 s20, 6912")
    k.e("v_mul_lo_u32 v5, v3, s20")
    k.e("s_lshl_b32 s3, s2, 6")
    k.e("v_lshl_add_u32 v5, v1, 2, v5")
    k.e("v_add_u32 v5, s3, v5")
    for i in range(9):
        k.e(f"s_mov_b32 s{21+i}, {6912*i}")
    k.srd_finish()
    for i in range(9):
        k.e(f"buffer_load_ushort v{10+i}, v4, s[8:11], 0 offen offset:{2*i}")
    for i in range(9):
        k.e(f"buffer_load_dword v{20+i}, v5, s[12:15], s{21+i} offen")
    k.e("s_waitcnt vmcnt(9)")
    k.e(f"s_mov_b32 s30, 0x{NLOG2E:x}")
    for i in range(9):
        k.e(f"v_lshlrev_b32 v{10+i}, 16, v{10+i}")
        k.e(f"v_mul_f32 v30, s30, v{10+i}")
        k.e("v_exp_f32 v30, v30")
        k.e("s_nop 0")
        k.e("v_add_f32 v30, 1.0, v30")
        k.e("v_rcp_f32 v30, v30")
        k.e("s_nop 0")
        k.e(f"v_mul_f32 v{10+i}, v{10+i}, v30")
        bf16r(k, 10+i, 10+i)
    k.e("v_mov_b32 v32, 0"); k.e("v_mov_b32 v33, 0")
    k.e("s_waitcnt vmcnt(0)")
    for i in range(9):
        k.e(f"v_lshlrev_b32 v34, 16, v{20+i}")
        k.e(f"v_and_b32 v35, 0xffff0000, v{20+i}")
        k.e(f"v_fmac_f32 v32, v{10+i}, v34")
        k.e(f"v_fmac_f32 v33, v{10+i}, v35")
    k.e("v_lshlrev_b32 v6, 7, v2")
    k.e("v_lshl_add_u32 v6, v1, 3, v6")
    k.e("ds_write_b64 v6, v[32:33]")
    k.e("s_waitcnt lgkmcnt(0)")
    k.e("s_barrier")
    k.e("v_cmp_gt_u32 vcc, 256, v0")
    k.e("s_and_saveexec_b64 s[32:33], vcc")
    k.e("s_cbranch_execz mod_skip1")
    k.e("v_and_b32 v7, 31, v0")
    k.e("v_lshrrev_b32 v8, 5, v0")
    k.e("v_lshlrev_b32 v9, 10, v8")
    k.e("v_lshl_add_u32 v9, v7, 2, v9")
    for i in range(8):
        k.e(f"ds_read_b32 v{20+i}, v9 offset:{128*i}")
    k.e("s_waitcnt lgkmcnt(0)")
    for i in range(1, 8):
        k.e(f"v_add_f32 v20, v20, v{20+i}")
    k.e("v_lshlrev_b32 v9, 2, v0")
    k.e("ds_write_b32 v9, v20 offset:8192")
    k.e("s_waitcnt lgkmcnt(0)")
    k.label("mod_skip1")
    k.e("s_mov_b64 exec, s[32:33]")
    k.e("s_barrier")
    k.e("v_cmp_gt_u32 vcc, 32, v0")
    k.e("s_and_saveexec_b64 s[32:33], vcc")
    k.e(f"s_cbranch_execz {done}")
    k.e("v_lshlrev_b32 v9, 2, v0")
    for i in range(8):
        k.e(f"ds_read_b32 v{20+i}, v9 offset:{8192+128*i}")
    k.e("s_waitcnt lgkmcnt(0)")
    for i in range(1, 8):
        k.e(f"v_add_f32 v20, v20, v{20+i}")
    bf16r(k, 20, 20)
    k.e("s_lshl_b32 s3, s2, 7")
    k.e("v_add_u32 v9, s3, v9")
    k.e("buffer_store_dword v20, v9, s[16:19], 0 offen")
    k.tl_end()
    k.label(done)
    k.e("s_endpgm")
    return k

def ln_body(k, X, CA, SA, OUT, T, smask, wait_mod=False):
    t0, t1, t2, t3, t4, t5 = T, T+1, T+2, T+3, T+4, T+5
    k.e(f"v_add_f32 v{t0}, v{X}, v{X+1}")
    for i in range(2, 10):
        k.e(f"v_add_f32 v{t0}, v{t0}, v{X+i}")
    wave_sum(k, t0, 40)
    k.e("s_mov_b32 s44, 0x3ae38e39")
    k.e(f"v_mul_f32 v{t0}, s44, v{t0}")
    k.e(f"v_mov_b32 v{t1}, 0")
    for i in range(8):
        k.e(f"v_sub_f32 v{t2}, v{X+i}, v{t0}")
        k.e(f"v_fmac_f32 v{t1}, v{t2}, v{t2}")
    k.e(f"s_mov_b64 s[46:47], exec")
    k.e(f"s_mov_b64 exec, s[{smask}:{smask+1}]")
    for i in range(8, 10):
        k.e(f"v_sub_f32 v{t2}, v{X+i}, v{t0}")
        k.e(f"v_fmac_f32 v{t1}, v{t2}, v{t2}")
    k.e(f"s_mov_b64 exec, s[46:47]")
    wave_sum(k, t1, 40)
    k.e(f"v_mul_f32 v{t1}, s44, v{t1}")
    bf16r2(k, t0, t1, t2)
    k.e("s_mov_b32 s45, 0x3727c5ac")
    k.e(f"v_add_f32 v{t1}, s45, v{t1}")
    bf16r(k, t1, t1)
    k.e(f"v_sqrt_f32 v{t1}, v{t1}")
    k.e("s_nop 0")
    bf16r(k, t1, t1)
    k.e(f"v_rcp_f32 v{t2}, v{t1}")
    k.e("s_nop 0")
    if wait_mod: k.e("s_waitcnt vmcnt(0)")
    for j in range(5):
        a, b = X+2*j, X+2*j+1
        k.e(f"v_sub_f32 v{a}, v{a}, v{t0}")
        k.e(f"v_sub_f32 v{b}, v{b}, v{t0}")
        bf16r2(k, a, b, t3)
        for r in (a, b):
            k.e(f"v_mul_f32 v{t4}, v{r}, v{t2}")
            k.e(f"v_fma_f32 v{t5}, -v{t4}, v{t1}, v{r}")
            k.e(f"v_fma_f32 v{r}, v{t5}, v{t2}, v{t4}")
        bf16r2(k, a, b, t3)
        ca, cb = CA+2*j, CA+2*j+1
        k.e(f"v_add_f32 v{ca}, 1.0, v{ca}")
        k.e(f"v_add_f32 v{cb}, 1.0, v{cb}")
        bf16r2(k, ca, cb, t3)
        k.e(f"v_mul_f32 v{a}, v{a}, v{ca}")
        k.e(f"v_mul_f32 v{b}, v{b}, v{cb}")
        bf16r2(k, a, b, t3)
        k.e(f"v_add_f32 v{a}, v{a}, v{SA+2*j}")
        k.e(f"v_add_f32 v{b}, v{b}, v{SA+2*j+1}")
        k.e(f"v_cvt_pk_bf16_f32 v{OUT+j}, v{a}, v{b}")

def gen_ln1():
    k = Kern("ln1_kernel", (512,1,1), (256,1,1), 0, nvgpr=64, nsgpr=102)
    k.tl_start()
    k.e("s_cmp_ge_u32 s2, 512")
    k.e("s_cbranch_scc1 ln1_done")
    k.srd(8, 'x', 2048*576*2); k.srd(12, 'ws', 3456*4, L.MOD); k.srd(16, 'ws', 2048*576*2, L.H1); k.srd(24, 'wq', 576*4096*2)
    k.e("v_and_b32 v1, 63, v0")
    k.e("v_lshrrev_b32 v2, 6, v0")
    k.e("s_lshl_b32 s3, s2, 2")
    k.e("v_add_u32 v2, s3, v2")
    k.e("s_movk_i32 s4, 1152")
    k.e("v_mul_lo_u32 v2, v2, s4")
    k.e("v_lshl_add_u32 v2, v1, 2, v2")
    k.e("v_lshlrev_b32 v3, 3, v1")
    k.e("v_cmp_gt_u32 s[20:21], 32, v1")
    for i in range(10):
        k.e(f"v_mov_b32 v{10+i}, 0")
    k.e("v_mov_b32 v8, 0")
    k.e("s_movk_i32 s5, 2304")
    k.srd_finish()
    for j in range(4):
        k.e(f"buffer_load_dword v{4+j}, v2, s[8:11], 0 offen offset:{256*j}")
    for j in range(4):
        k.e(f"buffer_load_dwordx2 v[{20+2*j}:{21+2*j}], v3, s[12:15], s5 offen offset:{512*j}")
        k.e(f"buffer_load_dwordx2 v[{30+2*j}:{31+2*j}], v3, s[12:15], 0 offen offset:{512*j}")
    k.e("s_mov_b64 s[22:23], exec")
    k.e("s_mov_b64 exec, s[20:21]")
    k.e("buffer_load_dword v8, v2, s[8:11], 0 offen offset:1024")
    k.e(f"buffer_load_dwordx2 v[28:29], v3, s[12:15], s5 offen offset:2048")
    k.e(f"buffer_load_dwordx2 v[38:39], v3, s[12:15], 0 offen offset:2048")
    k.e("s_mov_b64 exec, s[22:23]")
    k.e("s_mul_i32 s6, s2, 9216")
    k.e("v_lshlrev_b32 v9, 7, v0")
    k.e("v_cmp_gt_u32 vcc, 72, v0")
    k.e("s_and_saveexec_b64 s[28:29], vcc")
    k.e("s_cbranch_execz ln1_nopf")
    k.e("buffer_load_dword v60, v9, s[24:27], s6 offen")
    k.label("ln1_nopf")
    k.e("s_mov_b64 exec, s[28:29]")
    k.e("s_waitcnt vmcnt(0)")
    for j in range(5):
        k.e(f"v_lshlrev_b32 v{10+2*j}, 16, v{4+j}")
        k.e(f"v_and_b32 v{11+2*j}, 0xffff0000, v{4+j}")
    ln_body(k, 10, 20, 30, 40, 48, 20)
    for j in range(4):
        k.e(f"buffer_store_dword v{40+j}, v2, s[16:19], 0 offen offset:{256*j}")
    k.e("s_mov_b64 exec, s[20:21]")
    k.e("buffer_store_dword v44, v2, s[16:19], 0 offen offset:1024")
    k.tl_end()
    k.label("ln1_done")
    k.e("s_endpgm")
    return k

def gen_ln2(NS):
    k = Kern("ln2_kernel", (512,1,1), (256,1,1), 0, nvgpr=40+10*NS+24, nsgpr=102)
    k.tl_start()
    k.e("s_cmp_ge_u32 s2, 512")
    k.e("s_cbranch_scc1 ln2_done")
    k.srd(8, 'x', 2048*576*2); k.srd(12, 'ws', 3456*4, L.MOD); k.srd(16, 'ws', 2048*576*2, L.H2)
    k.srd(24, 'ws', 2048*576*2, L.X1); k.srd(28, 'ws', NS*2048*576*4, L.PART)
    k.e("v_and_b32 v1, 63, v0")
    k.e("v_lshrrev_b32 v2, 6, v0")
    k.e("s_lshl_b32 s3, s2, 2")
    k.e("v_add_u32 v2, s3, v2")
    k.e("s_movk_i32 s4, 1152")
    k.e("v_mul_lo_u32 v2, v2, s4")
    k.e("v_lshlrev_b32 v3, 3, v1")
    k.e("v_lshl_add_u32 v9, v2, 1, v3")
    k.e("v_lshl_add_u32 v2, v1, 2, v2")
    k.e("v_cmp_gt_u32 s[20:21], 32, v1")
    P = 64
    GA = 40
    k.e("v_mov_b32 v8, 0")
    for s in range(NS):
        k.e(f"v_mov_b32 v{P+10*s+8}, 0"); k.e(f"v_mov_b32 v{P+10*s+9}, 0")
        k.e(f"s_mov_b32 s{48+s}, {s*2048*576*4}")
    k.e(f"v_mov_b32 v{GA+8}, 0"); k.e(f"v_mov_b32 v{GA+9}, 0")
    k.e(f"s_movk_i32 s5, {3*2304}"); k.e(f"s_movk_i32 s6, {4*2304}"); k.e(f"s_movk_i32 s7, {2*2304}")
    k.srd_finish()
    for s in range(NS):
        for j in range(4):
            k.e(f"buffer_load_dwordx2 v[{P+10*s+2*j}:{P+10*s+2*j+1}], v9, s[28:31], s{48+s} offen offset:{512*j}")
    for j in range(4):
        k.e(f"buffer_load_dword v{4+j}, v2, s[8:11], 0 offen offset:{256*j}")
    for j in range(4):
        k.e(f"buffer_load_dwordx2 v[{GA+2*j}:{GA+2*j+1}], v3, s[12:15], s7 offen offset:{512*j}")
    for j in range(4):
        k.e(f"buffer_load_dwordx2 v[{20+2*j}:{21+2*j}], v3, s[12:15], s6 offen offset:{512*j}")
        k.e(f"buffer_load_dwordx2 v[{30+2*j}:{31+2*j}], v3, s[12:15], s5 offen offset:{512*j}")
    k.e("s_mov_b64 s[22:23], exec")
    k.e("s_mov_b64 exec, s[20:21]")
    for s in range(NS):
        k.e(f"buffer_load_dwordx2 v[{P+10*s+8}:{P+10*s+9}], v9, s[28:31], s{48+s} offen offset:2048")
    k.e("buffer_load_dword v8, v2, s[8:11], 0 offen offset:1024")
    k.e(f"buffer_load_dwordx2 v[{GA+8}:{GA+9}], v3, s[12:15], s7 offen offset:2048")
    k.e(f"buffer_load_dwordx2 v[28:29], v3, s[12:15], s6 offen offset:2048")
    k.e(f"buffer_load_dwordx2 v[38:39], v3, s[12:15], s5 offen offset:2048")
    k.e("s_mov_b64 exec, s[22:23]")
    k.e("s_waitcnt vmcnt(0)")
    for i in range(10):
        for s in range(1, NS):
            k.e(f"v_add_f32 v{P+i}, v{P+i}, v{P+10*s+i}")
    for j in range(5):
        a, b = P+2*j, P+2*j+1
        bf16r2(k, a, b, 50)
        k.e(f"v_mul_f32 v{a}, v{a}, v{GA+2*j}")
        k.e(f"v_mul_f32 v{b}, v{b}, v{GA+2*j+1}")
        bf16r2(k, a, b, 50)
        k.e(f"v_lshlrev_b32 v{10+2*j}, 16, v{4+j}")
        k.e(f"v_and_b32 v{11+2*j}, 0xffff0000, v{4+j}")
        k.e(f"v_add_f32 v{10+2*j}, v{10+2*j}, v{a}")
        k.e(f"v_add_f32 v{11+2*j}, v{11+2*j}, v{b}")
        k.e(f"v_cvt_pk_bf16_f32 v{4+j}, v{10+2*j}, v{11+2*j}")
        k.e(f"v_lshlrev_b32 v{10+2*j}, 16, v{4+j}")
        k.e(f"v_and_b32 v{11+2*j}, 0xffff0000, v{4+j}")
    for j in range(4):
        k.e(f"buffer_store_dword v{4+j}, v2, s[24:27], 0 offen offset:{256*j}")
    k.e("s_mov_b64 exec, s[20:21]")
    k.e("buffer_store_dword v8, v2, s[24:27], 0 offen offset:1024")
    k.e("s_mov_b64 exec, s[22:23]")
    ln_body(k, 10, 20, 30, 40, 52, 20)
    for j in range(4):
        k.e(f"buffer_store_dword v{40+j}, v2, s[16:19], 0 offen offset:{256*j}")
    k.e("s_mov_b64 exec, s[20:21]")
    k.e("buffer_store_dword v44, v2, s[16:19], 0 offen offset:1024")
    k.tl_end()
    k.label("ln2_done")
    k.e("s_endpgm")
    return k

def gen_final(NS):
    k = Kern("final_kernel", (1152,1,1), (256,1,1), 0, nvgpr=16+4*NS+16, nsgpr=102)
    k.tl_start()
    k.e("s_cmp_ge_u32 s2, 1152")
    k.e("s_cbranch_scc1 final_done")
    k.srd(8, 'ws', 2048*576*2, L.X1); k.srd(12, 'ws', 3456*4, L.MOD); k.srd(16, 'out', 2048*576*2)
    k.srd(28, 'ws', NS*2048*576*4, L.PART)
    k.e("s_lshl_b32 s3, s2, 8")
    k.e("v_add_u32 v1, s3, v0")
    k.e("s_mov_b32 s4, 0x1c71c72")
    k.e("v_mul_hi_u32 v2, v1, s4")
    k.e("s_movk_i32 s5, 144")
    k.e("v_mul_lo_u32 v2, v2, s5")
    k.e("v_sub_u32 v2, v1, v2")
    k.e("v_lshlrev_b32 v2, 4, v2")
    k.e("v_lshlrev_b32 v3, 4, v1")
    k.e("v_lshlrev_b32 v4, 3, v1")
    for s in range(NS):
        k.e(f"s_mov_b32 s{48+s}, {s*2048*576*4}")
    k.e(f"s_movk_i32 s6, {5*576*4}")
    k.srd_finish()
    P = 16
    for s in range(NS):
        k.e(f"buffer_load_dwordx4 v[{P+4*s}:{P+4*s+3}], v3, s[28:31], s{48+s} offen")
    k.e("buffer_load_dwordx2 v[6:7], v4, s[8:11], 0 offen")
    k.e("buffer_load_dwordx4 v[8:11], v2, s[12:15], s6 offen")
    k.e("s_waitcnt vmcnt(0)")
    for i in range(4):
        for s in range(1, NS):
            k.e(f"v_add_f32 v{P+i}, v{P+i}, v{P+4*s+i}")
    T = P + 4*NS
    for j in range(2):
        a, b = P+2*j, P+2*j+1
        bf16r2(k, a, b, T)
        k.e(f"v_mul_f32 v{a}, v{a}, v{8+2*j}")
        k.e(f"v_mul_f32 v{b}, v{b}, v{9+2*j}")
        bf16r2(k, a, b, T)
        k.e(f"v_lshlrev_b32 v{T+1}, 16, v{6+j}")
        k.e(f"v_and_b32 v{T+2}, 0xffff0000, v{6+j}")
        k.e(f"v_add_f32 v{a}, v{a}, v{T+1}")
        k.e(f"v_add_f32 v{b}, v{b}, v{T+2}")
        k.e(f"v_cvt_pk_bf16_f32 v{12+j}, v{a}, v{b}")
    k.e("buffer_store_dwordx2 v[12:13], v4, s[16:19], 0 offen")
    k.tl_end()
    k.label("final_done")
    k.e("s_endpgm")
    return k
```

```python
import sys
from gen_common import *
from gen_small import *
from gen_attn import *
from gen_k1 import gen_k1
from gen_ffn1 import gen_ffn1
HEADER = open("adaLN_cond__mha_block_cached__dense_activation_silu__prompt.s.ref").read().split("; Override launch")[0]
def main():
    which = sys.argv[2] if len(sys.argv) > 2 else "all"
    import os
    ks = ([gen_k1()] if os.environ.get('K1','0')=='1' else [gen_mod(), gen_ln1()]) + [gen_attn(dbg=os.environ.get('DBG','0')=='1')]
    if which == "all":
        from gen_gemm import gen_one
        ks += [gen_one('oproj'), gen_ln2(4), (gen_ffn1() if os.environ.get('F2P','1')=='1' else gen_one('ffn1')), gen_one('ffn2'), gen_final(4)]
    txt = assemble(ks, ks, HEADER)
    open(sys.argv[1], "w").write(txt)
main()
```

```python
from gen_common import *

class VM:
    def __init__(self): self.q = []
    def issue(self, tag): self.q.append(tag)
    def wait_n(self, tag):
        idx = max(i for i, t in enumerate(self.q) if t == tag)
        return len(self.q) - 1 - idx

QSCALE = 0x3e0293ee
THR = 0x4b800000

vLANE, vL31, vHALF = 1, 2, 3
KADDR = 8
VADDR = 16
KDMA = 20
VDMA, WDMA = 24, 25
LSUM = 26
LT = 28
TMP = 30
SA_, SB_ = 40, 72
PA_, PB_ = 104, 120
NEGM = 136
RING = 168
WADDR = 200
HDMA = 204
WQD = 232
HADDR = 236
HR = 240
PFV = 38
XT = 208
QA = 128
PF = 6

def mf(D, A, B, C):
    return f"v_mfma_f32_32x32x16_bf16 {D}, {A}, {B}, {C}"
def vr(b, n): return f"v[{b}:{b+n-1}]"
def ar(b, n): return f"a[{b}:{b+n-1}]"

def softmax_instrs(S, P, first_done=None):
    out = []
    for q in range(2):
        for pr in range(8):
            ta = TMP + (pr % 2) * 2; tb = ta + 1
            s = S + 16 * q + 2 * pr
            out.append((f"v_exp_f32 v{ta}, v{s}", 8))
            out.append((f"v_exp_f32 v{tb}, v{s+1}", 8))
            if pr == 0:
                out.append(("s_nop 0", 4))
                out.append((f"v_add_f32 v{LT+q}, v{ta}, v{tb}", 4))
            else:
                out.append((f"v_add_f32 v{LT+q}, v{LT+q}, v{ta}", 4))
                out.append((f"v_add_f32 v{LT+q}, v{LT+q}, v{tb}", 4))
            out.append((f"v_cvt_pk_bf16_f32 v{P+8*q+pr}, v{ta}, v{tb}", 4))
    return out

def rowmax(k, S, q, t, t2):
    b = S + 16 * q
    k.e(f"v_max3_f32 v{t}, v{b}, v{b+1}, v{b+2}")
    for i in range(3, 15, 2):
        k.e(f"v_max3_f32 v{t}, v{t}, v{b+i}, v{b+i+1}")
    k.e(f"v_max_f32 v{t}, v{t}, v{b+15}")
    k.e(f"v_mov_b32 v{t2}, v{t}")
    k.e("s_nop 1")
    k.e(f"v_permlane32_swap_b32 v{t2}, v{t}")
    k.e("s_nop 1")
    k.e(f"v_max_f32 v{t}, v{t}, v{t2}")

def rare_path(k, lab, ret, SX, SY, PX):
    k.label(lab)
    k.e("s_nop 15"); k.e("s_nop 15")
    for q in range(2):
        t, t2, f = XT, XT + 1, XT + 2
        rowmax(k, SX, q, t, t2)
        k.e(f"v_max_f32 v{t}, 0, v{t}")
        k.e(f"v_sub_f32 v{f}, 0, v{t}")
        k.e(f"v_exp_f32 v{f}, v{f}")
        k.e("s_nop 0")
        k.e(f"v_mul_f32 v{LSUM+q}, v{LSUM+q}, v{f}")
        for i in range(64):
            k.e(f"v_accvgpr_read_b32 v{t2}, a{64*q+i}")
            k.e(f"v_mul_f32 v{t2}, v{t2}, v{f}")
            k.e(f"v_accvgpr_write_b32 a{64*q+i}, v{t2}")
        for i in range(16):
            k.e(f"v_sub_f32 v{NEGM+16*q+i}, v{NEGM+16*q+i}, v{t}")
            k.e(f"v_sub_f32 v{SX+16*q+i}, v{SX+16*q+i}, v{t}")
            k.e(f"v_sub_f32 v{SY+16*q+i}, v{SY+16*q+i}, v{t}")
    for ins, _ in softmax_instrs(SX, PX):
        k.e(ins)
    k.e("s_nop 1")
    k.e(f"s_branch {ret}")

def gen_attn(dbg=False):
    k = Kern("attn_kernel", (256,1,1), (256,1,1), 147456, nvgpr=256, nagpr=256)
    k.tl_start()
    k.e("s_cmp_ge_u32 s2, 256")
    k.e("s_cbranch_scc1 attn_done")
    k.srd(8, 'k', 32*2048*128*2); k.srd(12, 'v', 32*2048*128*2); k.srd(16, 'wq', 576*4096*2)
    k.srd(20, 'ws', 2048*576*2, L.H1); k.srd(24, 'ws', 2048*4096*2, L.O)
    k.srd(40, 'wo', 4096*576*2); k.srd(44, 'w1', 576*4608*2); k.srd(48, 'w2', 4608*576*2)
    k.e("s_and_b32 s3, s2, 31")
    k.e("s_lshr_b32 s4, s2, 5")
    k.e("v_lshrrev_b32 v4, 6, v0")
    k.e(f"v_and_b32 v{vLANE}, 63, v0")
    k.e("v_readfirstlane_b32 s5, v4")
    k.e(f"v_and_b32 v{vL31}, 31, v0")
    k.e(f"v_lshrrev_b32 v{vHALF}, 5, v{vLANE}")
    k.e(f"v_and_b32 v4, 15, v{vL31}")
    k.e(f"v_lshlrev_b32 v5, 8, v{vL31}")
    for ks in range(8):
        k.e(f"v_add_u32 v6, {2*ks}, v{vHALF}")
        k.e("v_xor_b32 v6, v6, v4")
        k.e(f"v_lshl_add_u32 v{KADDR+ks}, v6, 4, v5")
    k.e(f"v_bfe_u32 v4, v{vLANE}, 2, 2")
    k.e(f"v_and_b32 v5, 3, v{vLANE}")
    k.e(f"v_bfe_u32 v6, v{vLANE}, 4, 1")
    k.e("v_lshlrev_b32 v5, 3, v5")
    k.e("v_lshl_add_u32 v5, v6, 5, v5")
    k.e("v_lshl_add_u32 v5, v4, 8, v5")
    for db in range(4):
        k.e(f"v_xor_b32 v6, {db}, v4")
        k.e("v_lshl_add_u32 v6, v6, 6, v5")
        k.e(f"v_lshl_add_u32 v{WADDR+db}, v{vHALF}, 11, v6")
        k.e(f"v_lshl_add_u32 v{VADDR+db}, v{vHALF}, 10, v6")
        k.e(f"v_add_u32 v{VADDR+db}, 0x10000, v{VADDR+db}")
    k.e(f"v_lshrrev_b32 v4, 4, v{vLANE}")
    k.e(f"v_and_b32 v5, 15, v{vLANE}")
    for c in range(4):
        k.e(f"v_add_u32 v6, {4*c}, v4")
        k.e("v_xor_b32 v6, v6, v5")
        k.e("v_lshlrev_b32 v6, 4, v6")
        k.e(f"v_lshl_add_u32 v{KDMA+c}, v4, 8, v6")
    k.e("v_lshlrev_b32 v6, 2, v4")
    k.e("v_xor_b32 v6, v6, v5")
    k.e("v_lshlrev_b32 v6, 4, v6")
    k.e(f"v_lshl_add_u32 v{VDMA}, v4, 8, v6")
    k.e(f"v_lshl_add_u32 v{WDMA}, v4, 13, v6")
    k.e(f"v_lshrrev_b32 v4, 3, v{vLANE}")
    k.e(f"v_and_b32 v5, 7, v{vLANE}")
    k.e(f"v_lshrrev_b32 v6, 4, v{vLANE}")
    k.e("s_movk_i32 s6, 1152")
    for c in range(4):
        k.e(f"v_add_u32 v7, {4*(c&1)}, v6")
        k.e("v_xor_b32 v7, v7, v5")
        k.e("v_lshlrev_b32 v7, 4, v7")
        k.e(f"v_add_u32 v{HDMA+c}, {8*c}, v4")
        k.e(f"v_mul_lo_u32 v{HDMA+c}, v{HDMA+c}, s6")
        k.e(f"v_add_u32 v{HDMA+c}, v{HDMA+c}, v7")
        if c: k.e(f"v_subrev_u32 v{HDMA+c}, {1024*c}, v{HDMA+c}")
    for c in range(4):
        k.e(f"v_add_u32 v{WQD+c}, {4*c*8192 - 1024*c}, v{WDMA}")
    k.e(f"v_bfe_u32 v4, v{vL31}, 1, 3")
    k.e(f"v_lshlrev_b32 v5, 7, v{vL31}")
    k.e("s_lshl_b32 s6, s5, 13")
    k.e("v_add_u32 v5, s6, v5")
    for ks in range(4):
        k.e(f"v_add_u32 v6, {2*ks}, v{vHALF}")
        k.e("v_xor_b32 v6, v6, v4")
        k.e(f"v_lshl_add_u32 v{HADDR+ks}, v6, 4, v5")
    for db in range(4):
        k.e(f"v_add_u32 v{WADDR+db}, 32768, v{WADDR+db}")
    k.e("s_lshl_b32 s30, s5, 12")
    k.e("s_lshl_b32 s28, s3, 19")
    k.e("s_add_u32 s28, s28, s30")
    k.e("s_mov_b32 s29, s28")
    k.e(f"s_mov_b32 s32, 0x{THR:x}")
    k.e("s_lshl_b32 s33, s3, 8")
    k.e("s_lshl_b32 s6, s5, 17")
    k.e("s_add_u32 s33, s33, s6")
    k.e("s_lshl_b32 s37, s5, 13")
    k.e("s_lshl_b32 s6, s4, 8")
    k.e("s_lshl_b32 s7, s5, 6")
    k.e("s_add_u32 s6, s6, s7")
    k.e("s_mul_i32 s34, s6, 1152")
    k.e("s_lshl_b32 s35, s6, 8")
    k.e("s_lshl_b32 s7, s3, 19")
    k.e("s_add_u32 s35, s35, s7")
    k.dbg_init(dbg)
    k.srd_finish()
    stamp = k.stamp
    stamp()
    vm = VM()
    QST = 49152
    def q_dma(st):
        b = (st % 3) * QST
        out = []
        for hh in range(2):
            out.append(f"s_add_u32 m0, s37, {b + 4096*hh}\n    s_nop 0")
            for c in range(4):
                out.append(f"buffer_load_dwordx4 v{HDMA+c}, s[20:23], {'s34' if hh == 0 else 's38'} offen offset:{1024*c} lds")
        out.append(f"s_add_u32 m0, s30, {b + 32768}\n    s_nop 0")
        for c in range(4):
            out.append(f"buffer_load_dwordx4 v{WQD+c}, s[16:19], s33 offen offset:{1024*c} lds")
        out.append("s_add_u32 s34, s34, 128")
        out.append("s_add_u32 s38, s38, 128")
        out.append(f"s_add_u32 s33, s33, {64*8192}")
        return out
    def emit_vm(ins, tag):
        k.e(ins)
        if ins.startswith("buffer"): vm.issue(tag)
    def kv_dma(which, slot, emit):
        out = []
        if which == 'K':
            out.append(f"s_add_u32 m0, s30, {slot*16384}\n    s_nop 0")
            for c in range(4):
                out.append(f"buffer_load_dwordx4 v{KDMA+c}, s[8:11], s28 offen offset:{1024*c} lds")
            out.append("s_add_u32 s28, s28, 16384")
        else:
            out.append(f"s_add_u32 m0, s30, {65536 + slot*16384}\n    s_nop 0")
            for c in range(4):
                out.append(f"buffer_load_dwordx4 v{VDMA}, s[12:15], s29 offen offset:{1024*c} lds")
            out.append("s_add_u32 s29, s29, 16384")
        if emit:
            for o in out:
                k.e(o)
                if o.startswith("buffer"): vm.issue(which)
        return out
    k.e("s_add_u32 s38, s34, 36864")
    for st in range(3):
        for ins in q_dma(st): emit_vm(ins, f"S{st}")
    ACC = 40
    NF = 9 * 16
    QPF = 5
    QBAR = 16 - QPF + 2
    def qbar_gap(st): return -1 if st == 0 else (st-1)*16 + QBAR - 1
    issue = {}
    for F in range(NF):
        issue.setdefault(max(F - QPF, qbar_gap(F // 16)), []).append(('W', F))
    for st in range(9):
        for ks in range(4):
            issue.setdefault(max(st*16 + ks*4 - 4, qbar_gap(st)), []).insert(0, ('H', st*4+ks))
    dsq = []; cur = [0]
    def set_stage(st):
        if cur[0] != st:
            d = ((st % 3) - (cur[0] % 3)) * QST
            for r in list(range(HADDR, HADDR+4)) + list(range(WADDR, WADDR+4)):
                k.e(f"v_add_u32 v{r}, {d}, v{r}" if d > 0 else f"v_subrev_u32 v{r}, {-d}, v{r}")
            cur[0] = st
    def do_reads(g):
        for kind, idx in issue.get(g, []):
            if kind == 'W':
                st, ks, db = idx // 16, (idx % 16) // 4, idx % 4
                set_stage(st)
                r = RING + 4 * (idx % 8)
                k.e(f"ds_read_b64_tr_b16 v[{r}:{r+1}], v{WADDR+db} offset:{ks*4096}")
                k.e(f"ds_read_b64_tr_b16 v[{r+2}:{r+3}], v{WADDR+db} offset:{ks*4096+1024}")
                dsq.extend([('W', idx)] * 2)
            else:
                st, ks = idx // 4, idx % 4
                set_stage(st)
                for q in range(2):
                    r = HR + 8 * (idx % 2) + 4 * q
                    k.e(f"ds_read_b128 v[{r}:{r+3}], v{HADDR+ks} offset:{4096*q}")
                    dsq.append(('H', idx))
    def need(tags):
        i = max(i for i, t in enumerate(dsq) if t in tags)
        return len(dsq) - 1 - i
    k.e(f"s_waitcnt vmcnt({vm.wait_n('S0')})")
    k.e("s_barrier")
    do_reads(-1)
    pend = []
    for F in range(NF):
        st, ks, db = F // 16, (F % 16) // 4, F % 4
        k.e(f"s_waitcnt lgkmcnt({min(15, need([('W', F), ('H', st*4+ks)]))})")
        for q in range(2):
            d = ACC + (q*4+db)*16
            k.e(mf(vr(d, 16), vr(RING + 4*(F % 8), 4), vr(HR + 8*((st*4+ks) % 2) + 4*q, 4), "0" if (st == 0 and ks == 0) else vr(d, 16)))
            if q == 0:
                if F % 16 == QBAR - 1:
                    if st + 1 < 9:
                        k.e(f"s_waitcnt vmcnt({vm.wait_n(f'S{st+1}')}) lgkmcnt(0)")
                    else:
                        k.e("s_waitcnt lgkmcnt(0)")
                    k.e("s_barrier")
                    if st + 3 < 9: pend = [(i, f"S{st+3}") for i in q_dma(st + 3)]
                    elif st == 6: pend = [(i, 'K') for t in range(3) for i in kv_dma('K', t, False)]
                    elif st == 7: pend = [(i, 'V') for t in range(2) for i in kv_dma('V', t, False)]
                do_reads(F)
            for _ in range(2):
                if pend:
                    i, t = pend.pop(0); emit_vm(i, t)
            if 2*F + q < 128: k.e(f"v_accvgpr_write_b32 a{2*F+q}, 0")
    assert not pend
    stamp()
    k.e("s_nop 15")
    k.e(f"s_mov_b32 s6, 0x{QSCALE:x}")
    for q in range(2):
        for db in range(4):
            for t in range(2):
                b = ACC + (q*4+db)*16 + 8*t
                for j in range(8):
                    k.e(f"v_mul_f32 v{b+j}, s6, v{b+j}")
                for j in range(4):
                    k.e(f"v_cvt_pk_bf16_f32 v{XT+j}, v{b+2*j}, v{b+2*j+1}")
                k.e("s_nop 1")
                k.e(f"v_permlane32_swap_b32 v{XT}, v{XT+2}")
                k.e(f"v_permlane32_swap_b32 v{XT+1}, v{XT+3}")
                k.e("s_nop 1")
                for j in range(4):
                    k.e(f"v_accvgpr_write_b32 a{QA + (q*8 + 2*db + t)*4 + j}, v{XT+j}")
    k.e(f"v_mov_b32 v{LSUM}, 0"); k.e(f"v_mov_b32 v{LSUM+1}, 0")
    k.e("s_waitcnt vmcnt(0)")
    k.e("s_barrier")
    k.e("s_lshl_b32 s6, s2, 2")
    k.e("s_add_u32 s6, s6, s5")
    k.e("s_mul_i32 s52, s6, 4608")
    k.e("s_mul_i32 s53, s6, 5184")
    k.e(f"v_lshlrev_b32 v{PFV}, 7, v{vLANE}")
    stamp()
    for ks in range(8):
        r = RING + 4 * ks
        k.e(f"ds_read_b128 v[{r}:{r+3}], v{KADDR+ks}")
    for ks in range(8):
        k.e(f"s_waitcnt lgkmcnt({7-ks})")
        r = RING + 4 * ks
        for q in range(2):
            d = SA_ + 16*q
            k.e(mf(vr(d, 16), vr(r, 4), ar(QA + (q*8+ks)*4, 4), "0" if ks == 0 else vr(d, 16)))
    k.e("s_nop 15")
    for q in range(2):
        rowmax(k, SA_, q, XT, XT+1)
        for i in range(16):
            k.e(f"v_sub_f32 v{NEGM+16*q+i}, 0, v{XT}")
            k.e(f"v_sub_f32 v{SA_+16*q+i}, v{SA_+16*q+i}, v{XT}")
    def frag_reads(it, f):
        sl = it % 4; sl1 = (it + 1) % 4
        r = RING + 4 * (f % 8)
        ph, j = f // 8, f % 8
        if ph == 0:
            return [f"ds_read_b128 v[{r}:{r+3}], v{KADDR+j} offset:{sl*16384 + 8192}"]
        if ph == 2:
            return [f"ds_read_b128 v[{r}:{r+3}], v{KADDR+j} offset:{sl1*16384}"]
        kk, db = j // 4, j % 4
        off = sl * 16384 + (8192 if ph == 3 else 0) + kk * 4096
        return [f"ds_read_b64_tr_b16 v[{r}:{r+1}], v{VADDR+db} offset:{off}",
                f"ds_read_b64_tr_b16 v[{r+2}:{r+3}], v{VADDR+db} offset:{off+2048}"]
    def nreads(f):
        return 1 if (f % 32) // 8 in (0, 2) else 2
    def mfma_of(t):
        f, q = t // 2, t % 2
        r = RING + 4 * (f % 8)
        ph, j = f // 8, f % 8
        if ph in (0, 2):
            S = SB_ if ph == 0 else SA_
            d = S + 16*q
            c = vr(NEGM + 16*q, 16) if j == 0 else vr(d, 16)
            return mf(vr(d, 16), vr(r, 4), ar(QA + (q*8+j)*4, 4), c)
        P = PA_ if ph == 1 else PB_
        kk, db = j // 4, j % 4
        o = (q*4+db)*16
        return mf(ar(o, 16), vr(r, 4), vr(P + 8*q + 4*kk, 4), ar(o, 16))
    smA = softmax_instrs(SA_, PA_)
    smB = softmax_instrs(SB_, PB_)
    winA = list(range(51, 64)) + list(range(0, 14))
    winB = list(range(19, 46))
    def distribute(ins, win):
        tot = sum(c for _, c in ins)
        res = {g: [] for g in win}
        acc = 0; i = 0
        for n, g in enumerate(win):
            target = tot * (n + 1) / len(win)
            while i < len(ins) and (acc + ins[i][1] / 2 <= target or n == len(win) - 1):
                res[g].append(ins[i][0]); acc += ins[i][1]; i += 1
        return res
    dA = distribute(smA, winA); dB = distribute(smB, winB)
    for g in range(51, 64):
        for ins in dA[g]: k.e(ins)
    for f in range(PF):
        for ins in frag_reads(0, f): k.e(ins)
    k.e("s_mov_b32 s31, 8")
    stamp()
    rares = []
    k.e(".p2align 6")
    k.label("attn_loop")
    for it in range(4):
        dmaK = kv_dma('K', (it + 3) % 4, False)
        dmaV = kv_dma('V', (it + 2) % 4, False)
        dma_at = {}
        seq = dmaK + dmaV
        slots = [1, 3, 5, 7, 9, 15, 17, 17, 47, 49, 49, 49]
        for s_, ins in zip(slots, seq):
            dma_at.setdefault(s_, []).append(ins)
        for t in range(64):
            f, q = t // 2, t % 2
            if t == 0:
                k.e(f"s_waitcnt vmcnt({9 if it in (1, 2) else 8})")
                k.e("s_barrier")
            if q == 0:
                n = sum(nreads(f + x) for x in range(1, PF))
                k.e(f"s_waitcnt lgkmcnt({n})")
            k.e(mfma_of(t))
            if q == 0:
                f2 = f + PF
                for ins in frag_reads(it + f2 // 32, f2 % 32): k.e(ins)
            for ins in dma_at.get(t, []): k.e(ins)
            if it == 0 and t == 50:
                k.e(f"buffer_load_dword v{PFV+1}, v{PFV}, s[40:43], s52 offen")
                k.e("s_mov_b64 s[40:41], s[44:45]"); k.e("s_mov_b32 s42, s46")
                k.e("s_mov_b64 s[44:45], s[48:49]"); k.e("s_mov_b32 s46, s50")
                k.e("s_mov_b32 s50, 0"); k.e("s_mov_b32 s52, s53")
            for ins in dA.get(t, []): k.e(ins)
            for ins in dB.get(t, []): k.e(ins)
            if t in (14, 46):
                lab = k.newlabel("rare"); ret = k.newlabel("ret")
                k.e(f"v_max_f32 v{TMP+4}, v{LT}, v{LT+1}")
                k.e(f"v_cmp_lt_f32 vcc, s32, v{TMP+4}")
                k.e(f"s_cbranch_vccnz {lab}")
                k.label(ret)
                k.e(f"v_add_f32 v{LSUM}, v{LSUM}, v{LT}")
                k.e(f"v_add_f32 v{LSUM+1}, v{LSUM+1}, v{LT+1}")
                if t == 14: rares.append((lab, ret, SA_, SB_, PA_))
                else: rares.append((lab, ret, SB_, SA_, PB_))
    k.e("s_sub_u32 s31, s31, 1")
    k.e("s_cmp_lg_u32 s31, 0")
    k.e("s_cbranch_scc1 attn_loop")
    stamp()
    k.e("s_nop 15")
    k.e("s_waitcnt vmcnt(0) lgkmcnt(0)")
    for q in range(2):
        l = LSUM + q
        k.e(f"v_mov_b32 v{XT}, v{l}")
        k.e("s_nop 1")
        k.e(f"v_permlane32_swap_b32 v{XT}, v{l}")
        k.e("s_nop 1")
        k.e(f"v_add_f32 v{l}, v{l}, v{XT}")
        k.e(f"v_rcp_f32 v{l}, v{l}")
        k.e("s_nop 0")
    k.e("s_barrier")
    k.e("s_mul_i32 s6, s5, 17408")
    k.e(f"v_mul_u32_u24 v4, 272, v{vL31}")
    k.e(f"v_lshl_add_u32 v4, v{vHALF}, 4, v4")
    k.e("v_add_u32 v4, s6, v4")
    k.e(f"v_lshrrev_b32 v5, 4, v{vLANE}")
    k.e(f"v_and_b32 v6, 15, v{vLANE}")
    k.e("v_lshlrev_b32 v6, 4, v6")
    k.e("v_mul_u32_u24 v7, 272, v5")
    k.e("v_add3_u32 v7, v7, v6, s6")
    k.e("v_lshl_add_u32 v6, v5, 8, v6")
    n = 0
    for q in range(2):
        for db in range(4):
            for gp in range(2):
                T = XT + 12 * (n % 2); n += 1
                for j in range(8):
                    k.e(f"v_accvgpr_read_b32 v{T+4+j}, a{(q*4+db)*16 + 8*gp + j}")
                for j in range(8):
                    k.e(f"v_mul_f32 v{T+4+j}, v{T+4+j}, v{LSUM+q}")
                for j in range(4):
                    k.e(f"v_cvt_pk_bf16_f32 v{T+j}, v{T+4+2*j}, v{T+5+2*j}")
                k.e("s_nop 1")
                k.e(f"v_permlane32_swap_b32 v{T}, v{T+2}")
                k.e(f"v_permlane32_swap_b32 v{T+1}, v{T+3}")
                k.e(f"ds_write_b128 v4, v[{T}:{T+3}] offset:{32*272*q + 64*db + 32*gp}")
    k.e("s_waitcnt lgkmcnt(0)")
    for j in range(16):
        k.e(f"ds_read_b128 v[{40+4*j}:{43+4*j}], v7 offset:{4*272*j}")
    for j in range(16):
        k.e(f"s_waitcnt lgkmcnt({15-j})")
        k.e(f"buffer_store_dwordx4 v[{40+4*j}:{43+4*j}], v6, s[24:27], s35 offen offset:{1024*(j%4)} sc1")
        if j % 4 == 3: k.e("s_add_u32 s35, s35, 4096")
    k.dbg_flush("attn_done")
    k.tl_end()
    k.label("attn_done")
    k.e("s_endpgm")
    for r in rares:
        rare_path(k, *r)
    return k
```

```python
import os
from gen_common import *
from gen_attn import VM, mf, vr, ar

NLOG2E = 0xbfb8aa3b
NSPLIT = 4

def silu_group(k, b, T, waddr, off):
    for j in range(4):
        bf16r2(k, b+2*j, b+2*j+1, T+j)
    for j in range(8):
        k.e(f"v_mul_f32 v{T+4+j}, s25, v{b+j}")
    for j in range(8):
        k.e(f"v_exp_f32 v{T+4+j}, v{T+4+j}")
    for j in range(8):
        k.e(f"v_add_f32 v{T+4+j}, 1.0, v{T+4+j}")
    for j in range(8):
        k.e(f"v_rcp_f32 v{T+4+j}, v{T+4+j}")
    for j in range(8):
        k.e(f"v_mul_f32 v{b+j}, v{b+j}, v{T+4+j}")
    for j in range(4):
        k.e(f"v_cvt_pk_bf16_f32 v{T+j}, v{b+2*j}, v{b+2*j+1}")
    k.e("s_nop 1")
    k.e(f"v_permlane32_swap_b32 v{T}, v{T+2}")
    k.e(f"v_permlane32_swap_b32 v{T+1}, v{T+3}")
    k.e(f"ds_write_b128 v{waddr}, v[{T}:{T+3}] offset:{off}")

RAW = 81920
def gen_gemm(name, xk, xoff, xsize, ldx, wk, wsize, ldw, nstage, mode, xbs=0):
    part = mode == 'part'
    TM = 64 if part else 128
    XB = TM * 128
    STAGE = XB + 36864
    KS = [0, 1] if part else [0, 1, 2, 3]
    MPS = 9 * len(KS)
    PFD = 8; NR = 10
    k = Kern(name, (256,1,1), (512,1,1), 3*STAGE, nvgpr=256, nsgpr=102)
    k.tl_start()
    ACC = 100; WR = 32; XR = 80
    XA = 4; WA = 8; XD = 10; WD = 14
    done = f"{name}_done"
    k.e("s_cmp_ge_u32 s2, 256")
    k.e(f"s_cbranch_scc1 {done}")
    k.srd(8, xk, xsize, xoff); k.srd(12, wk, wsize)
    if part: k.srd(16, 'ws', NSPLIT*2048*576*2, L.PART)
    else: k.srd(16, 'ws', 2048*4608*2, L.U)
    k.dbg_init(os.environ.get('DBG','0')=='1')
    k.e("v_lshrrev_b32 v4, 6, v0")
    k.e("v_and_b32 v1, 63, v0")
    k.e("v_readfirstlane_b32 s5, v4")
    k.e("v_and_b32 v2, 31, v0")
    k.e("v_lshrrev_b32 v3, 5, v1")
    k.e("s_and_b32 s6, s2, 7")
    k.e("s_lshr_b32 s7, s2, 3")
    if part:
        k.e("s_and_b32 s3, s6, 1"); k.e("s_lshl_b32 s3, s3, 4"); k.e("s_and_b32 s24, s7, 15"); k.e("s_add_u32 s3, s3, s24")
        k.e("s_lshr_b32 s4, s7, 4")
        k.e("s_lshr_b32 s6, s6, 1")
        k.e(f"s_mul_i32 s23, s6, {nstage*64}")
    else:
        k.e("s_and_b32 s3, s6, 1"); k.e("s_lshl_b32 s3, s3, 3"); k.e("s_and_b32 s24, s7, 7"); k.e("s_add_u32 s3, s3, s24")
        k.e("s_lshr_b32 s4, s6, 1"); k.e("s_lshl_b32 s4, s4, 2"); k.e("s_lshr_b32 s24, s7, 3"); k.e("s_add_u32 s4, s4, s24")
        k.e("s_mov_b32 s23, 0")
    k.e(f"s_mul_i32 s24, s3, {TM}")
    if part:
        k.e("s_mul_i32 s22, s24, 1152"); k.e(f"s_mul_i32 s25, s6, {2048*1152}"); k.e("s_add_u32 s22, s22, s25")
        k.e("s_mul_i32 s25, s4, 576"); k.e("s_add_u32 s22, s22, s25")
    else:
        k.e("s_lshl_b32 s22, s24, 7"); k.e("s_mul_i32 s30, s4, 36")
    k.srd_finish()
    k.stamp()
    k.e("s_cmp_ge_u32 s5, 4")
    k.e(f"s_cbranch_scc1 {name}_loader")
    if part:
        k.e("s_and_b32 s26, s5, 1")
        k.e("s_lshr_b32 s27, s5, 1")
        k.e("s_lshl_b32 s26, s26, 12")
        k.e("s_lshl_b32 s28, s27, 2")
        k.e(f"s_mul_i32 s27, s27, {2*9216}")
    else:
        k.e("s_lshl_b32 s26, s5, 12")
        k.e("s_mov_b32 s28, 0"); k.e("s_mov_b32 s27, 0")
    k.e("v_bfe_u32 v28, v2, 1, 3")
    k.e("v_lshlrev_b32 v29, 7, v2")
    k.e("v_add_u32 v29, s26, v29")
    k.e("v_add_u32 v31, s28, v3")
    for i in range(len(KS)):
        k.e(f"v_add_u32 v30, {2*i}, v31")
        k.e("v_xor_b32 v30, v30, v28")
        k.e(f"v_lshl_add_u32 v{XA+i}, v30, 4, v29")
    k.e("v_bfe_u32 v28, v1, 2, 2")
    k.e("v_lshl_add_u32 v28, v3, 3, v28")
    k.e("v_mul_u32_u24 v28, 576, v28")
    k.e("v_bfe_u32 v29, v1, 4, 1")
    k.e("v_lshl_add_u32 v28, v29, 5, v28")
    k.e("v_and_b32 v29, 3, v1")
    k.e("v_lshl_add_u32 v28, v29, 3, v28")
    k.e(f"v_add_u32 v{WA}, s27, v28")
    NM = nstage * MPS
    BAR = MPS - PFD + 3
    def bar_gap(s): return -1 if s == 0 else (s-1)*MPS + BAR - 1
    issue = {}
    for F in range(NM):
        issue.setdefault(max(F - PFD, bar_gap(F // MPS)), []).append(('W', F))
    nk = len(KS)
    for s in range(nstage):
        for i in range(nk):
            issue.setdefault(max(s*MPS + i*9 - PFD - 1, bar_gap(s)), []).insert(0, ('X', s*nk+i))
    dsq = []; cur = [0]
    def set_stage(s):
        if cur[0] != s:
            d = ((s % 3) - (cur[0] % 3)) * STAGE
            for r in list(range(XA, XA+nk)) + [WA]:
                k.e(f"v_add_u32 v{r}, {d}, v{r}" if d > 0 else f"v_subrev_u32 v{r}, {-d}, v{r}")
            cur[0] = s
    def do_reads(g):
        for kind, idx in issue.get(g, []):
            if kind == 'W':
                s, rem = idx // MPS, idx % MPS
                i, nb = rem // 9, rem % 9
                set_stage(s)
                r = WR + 4 * (idx % NR)
                off = XB + nb*64 + i*9216
                k.e(f"ds_read_b64_tr_b16 v[{r}:{r+1}], v{WA} offset:{off}")
                k.e(f"ds_read_b64_tr_b16 v[{r+2}:{r+3}], v{WA} offset:{off+2304}")
                dsq.extend([('W', idx)] * 2)
            else:
                s, i = idx // nk, idx % nk
                set_stage(s)
                r = XR + 4 * (idx % 4)
                k.e(f"ds_read_b128 v[{r}:{r+3}], v{XA+i}")
                dsq.append(('X', idx))
    def need(tags):
        i = max(i for i, t in enumerate(dsq) if t in tags)
        return len(dsq) - 1 - i
    k.e("s_barrier")
    k.stamp()
    do_reads(-1)
    for F in range(NM):
        s, rem = F // MPS, F % MPS
        i, nb = rem // 9, rem % 9
        k.e(f"s_waitcnt lgkmcnt({min(need([('W', F), ('X', s*nk+i)]), 15)})")
        d = ACC + 16*nb
        k.e(mf(vr(d, 16), vr(WR + 4*(F % NR), 4), vr(XR + 4*((s*nk+i) % 4), 4), "0" if F < 9 else vr(d, 16)))
        if rem == BAR - 1 and s + 1 < nstage:
            k.e("s_waitcnt lgkmcnt(0)")
            k.e("s_barrier")
        do_reads(F)
    k.stamp()
    k.e("s_nop 15")
    k.e("s_barrier")
    if part: LST = 1168
    else: LST = 592
    k.e("s_lshr_b32 s26, s26, 7")
    k.e("v_add_u32 v4, s26, v2")
    k.e(f"v_mul_u32_u24 v4, {LST}, v4")
    k.e("v_lshl_add_u32 v4, v3, 4, v4")
    if part:
        l1 = k.newlabel("wk1"); l2 = k.newlabel("wkj")
        k.e("s_cmp_lg_u32 s28, 0")
        k.e(f"s_cbranch_scc1 {l1}")
        k.e("s_barrier")
        k.e("v_add_u32 v5, s26, v2")
        k.e("v_mul_u32_u24 v5, 592, v5")
        k.e("v_lshl_add_u32 v5, v3, 4, v5")
        k.e(f"v_add_u32 v5, {RAW}, v5")
        for h in range(3):
            for i in range(12):
                idx = h*12 + i
                k.e(f"ds_read_b128 v[{WR+4*i}:{WR+4*i+3}], v4 offset:{128*(idx//4)+32*(idx%4)}")
            k.e("s_waitcnt lgkmcnt(0)")
            for ip in range(6):
                b0 = ACC + 4*(h*12 + 2*ip)
                for j in range(8):
                    k.e(f"v_add_f32 v{b0+j}, v{b0+j}, v{WR+8*ip+j}")
                T = XR + 4*(ip % 2)
                for j in range(4):
                    k.e(f"v_cvt_pk_bf16_f32 v{T+j}, v{b0+2*j}, v{b0+2*j+1}")
                k.e("s_nop 1")
                k.e(f"v_permlane32_swap_b32 v{T}, v{T+2}")
                k.e(f"v_permlane32_swap_b32 v{T+1}, v{T+3}")
                idx = h*12 + 2*ip
                k.e(f"ds_write_b128 v5, v[{T}:{T+3}] offset:{64*(idx//4)+32*((idx%4)//2)}")
        k.e("s_waitcnt lgkmcnt(0)")
        k.e(f"s_branch {l2}")
        k.label(l1)
        for idx in range(36):
            k.e(f"ds_write_b128 v4, v[{ACC+4*idx}:{ACC+4*idx+3}] offset:{128*(idx//4)+32*(idx%4)}")
        k.e("s_waitcnt lgkmcnt(0)")
        k.e("s_barrier")
        k.label(l2)
    else:
        k.e(f"s_lshl_b32 s25, s5, 14")
        k.e("v_lshlrev_b32 v5, 4, v1")
        k.e("v_add_u32 v5, s25, v5")
        k.e(f"v_add_u32 v5, {RAW}, v5")
        for i in range(16):
            r = ACC + 80 + 4*i
            k.e(f"ds_write_b128 v5, v[{r}:{r+3}] offset:{1024*i}")
        k.e("s_waitcnt lgkmcnt(0)")
        k.e("s_barrier")
        k.e(f"s_mov_b32 s25, 0x{NLOG2E:x}")
        n = 0
        for nb in range(5):
            for gp in range(2):
                silu_group(k, ACC + 16*nb + 8*gp, WR + 16 * (n % 3), 4, 64*nb+32*gp); n += 1
        k.e("s_waitcnt lgkmcnt(0)")
    k.e(f"s_branch {name}_store")
    k.label(f"{name}_loader")
    k.e("s_sub_u32 s5, s5, 4")
    nxc = TM // 32
    k.e(f"s_mul_i32 s25, s5, {TM//4}"); k.e("s_add_u32 s25, s25, s24")
    k.e(f"s_mul_i32 s20, s25, {ldx}")
    if xbs:
        k.e(f"s_lshr_b32 s25, s23, {(ldx//2).bit_length()-1}"); k.e(f"s_mul_i32 s25, s25, {xbs}")
    else:
        k.e("s_lshl_b32 s25, s23, 1")
    k.e("s_add_u32 s20, s20, s25")
    k.e("s_lshl_b32 s25, s5, 4"); k.e("s_add_u32 s25, s25, s23"); k.e(f"s_mul_i32 s21, s25, {ldw}")
    k.e("s_mul_i32 s25, s4, 576"); k.e("s_add_u32 s21, s21, s25")
    k.e(f"s_mul_i32 s26, s5, {nxc*1024}")
    k.e("s_mul_i32 s27, s5, 9216"); k.e(f"s_add_u32 s27, s27, {XB}")
    k.e("v_lshrrev_b32 v28, 3, v1")
    k.e("v_and_b32 v29, 7, v1")
    k.e("v_lshrrev_b32 v30, 4, v1")
    k.e(f"s_mov_b32 s25, {ldx}")
    for c in range(nxc):
        k.e(f"v_add_u32 v31, {4*(c&1)}, v30")
        k.e("v_xor_b32 v31, v31, v29")
        k.e("v_lshlrev_b32 v31, 4, v31")
        k.e(f"v_add_u32 v{XD+c}, {8*c}, v28")
        k.e(f"v_mul_lo_u32 v{XD+c}, v{XD+c}, s25")
        k.e(f"v_add_u32 v{XD+c}, v{XD+c}, v31")
        if c: k.e(f"v_subrev_u32 v{XD+c}, {1024*c}, v{XD+c}")
    for P in range(576): assert (P * 1821) >> 16 == P // 36
    k.e(f"s_mov_b32 s25, {ldw}")
    for j in range(9):
        k.e(f"v_add_u32 v28, {64*j}, v1")
        k.e("v_mul_u32_u24 v29, 1821, v28")
        k.e("v_lshrrev_b32 v29, 16, v29")
        k.e("v_mul_u32_u24 v30, 36, v29")
        k.e("v_sub_u32 v28, v28, v30")
        k.e(f"v_mul_lo_u32 v{WD+j}, v29, s25")
        k.e(f"v_lshl_add_u32 v{WD+j}, v28, 4, v{WD+j}")
        if j % 4: k.e(f"v_subrev_u32 v{WD+j}, {1024*(j%4)}, v{WD+j}")
    k.e("v_lshrrev_b32 v28, 2, v1")
    k.e("v_mul_lo_u32 v24, v28, s25")
    k.e("v_and_b32 v28, 3, v1")
    k.e("v_lshl_add_u32 v24, v28, 7, v24")
    k.e("v_and_b32 v28, 15, v1")
    k.e("v_mul_lo_u32 v25, v28, s25")
    k.e("v_add_u32 v25, 512, v25")
    k.e(f"v_and_b32 v28, {TM//4-1}, v1")
    k.e(f"s_mov_b32 s25, {ldx}")
    k.e("v_mul_lo_u32 v26, v28, s25")
    PFS = 3
    k.e(f"s_add_u32 s28, s20, {128*3}")
    k.e(f"s_add_u32 s29, s21, {64*ldw*3}")
    vm = VM()
    def pf(s):
        if s >= nstage or os.environ.get('PF','0') != '1': return
        k.e("buffer_load_dword v27, v26, s[8:11], s28 offen"); vm.issue('pf')
        k.e("buffer_load_dword v27, v24, s[12:15], s29 offen"); vm.issue('pf')
        k.e("buffer_load_dword v27, v25, s[12:15], s29 offen"); vm.issue('pf')
        k.e("s_add_u32 s28, s28, 128")
        k.e(f"s_add_u32 s29, s29, {64*ldw}")
    def dma(s):
        b = (s % 3) * STAGE
        k.e(f"s_add_u32 m0, s26, {b}"); k.e("s_nop 0")
        for c in range(nxc):
            k.e(f"buffer_load_dwordx4 v{XD+c}, s[8:11], s20 offen offset:{1024*c} lds"); vm.issue(s)
        for j in range(9):
            if j % 4 == 0:
                k.e(f"s_add_u32 m0, s27, {b + 4096*(j//4)}"); k.e("s_nop 0")
            k.e(f"buffer_load_dwordx4 v{WD+j}, s[12:15], s21 offen offset:{1024*(j%4)} lds"); vm.issue(s)
        if xbs and ((s + 1) * 128) % ldx == 0:
            k.e(f"s_add_u32 s20, s20, {xbs - ldx + 128}")
        else:
            k.e("s_add_u32 s20, s20, 128")
        k.e(f"s_add_u32 s21, s21, {64*ldw}")
    for s in range(3): dma(s)
    for s in range(3, 3 + PFS): pf(s)
    k.e(f"s_waitcnt vmcnt({vm.wait_n(0)})")
    k.e("s_barrier")
    for s in range(nstage - 1):
        k.e(f"s_waitcnt vmcnt({vm.wait_n(s+1)})")
        k.e("s_barrier")
        if s + 3 < nstage: dma(s + 3)
        pf(s + 3 + PFS)
    k.e("s_barrier")
    k.e("s_barrier")
    if not part:
        k.e(f"s_lshl_b32 s25, s5, 14")
        k.e("v_lshlrev_b32 v5, 4, v1")
        k.e("v_add_u32 v5, s25, v5")
        k.e(f"v_add_u32 v5, {RAW}, v5")
        for i in range(16):
            r = ACC + 4*i
            k.e(f"ds_read_b128 v[{r}:{r+3}], v5 offset:{1024*i}")
        k.e("s_lshl_b32 s26, s5, 5")
        k.e("v_add_u32 v4, s26, v2")
        k.e("v_mul_u32_u24 v4, 592, v4")
        k.e("v_lshl_add_u32 v4, v3, 4, v4")
        k.e(f"s_mov_b32 s25, 0x{NLOG2E:x}")
        n = 0
        for nb in range(4):
            for gp in range(2):
                if n == 0: k.e("s_waitcnt lgkmcnt(0)")
                silu_group(k, ACC + 16*nb + 8*gp, WR + 16 * (n % 3), 4, 64*(nb+5)+32*gp); n += 1
        k.e("s_waitcnt lgkmcnt(0)")
    k.e("s_add_u32 s5, s5, 4")
    k.label(f"{name}_store")
    k.e("s_barrier")
    PCS, MAG, LST = 36, 1821, 592
    GST = 1152 if part else 128
    RPW = 8 if part else 16
    NI = 5 if part else 9
    k.e(f"s_mul_i32 s25, s5, {RPW*LST}")
    if part: k.e(f"s_add_u32 s25, s25, {RAW}")
    k.e(f"s_mul_i32 s26, s5, {RPW*GST}")
    k.e("s_add_u32 s22, s22, s26")
    for j in range(NI):
        if part and j == 4: k.e("s_mov_b64 exec, 0xffffffff")
        k.e(f"v_add_u32 v28, {64*j}, v1")
        k.e(f"v_mul_u32_u24 v29, {MAG}, v28")
        k.e("v_lshrrev_b32 v29, 16, v29")
        k.e(f"v_mul_u32_u24 v30, {PCS}, v29")
        k.e("v_sub_u32 v28, v28, v30")
        if not part: k.e("v_add_u32 v31, s30, v28")
        k.e("v_lshlrev_b32 v28, 4, v28")
        k.e(f"v_mul_u32_u24 v30, {LST}, v29")
        k.e("v_add3_u32 v30, v30, v28, s25")
        k.e(f"ds_read_b128 v[{WR+4*j}:{WR+4*j+3}], v30")
        k.e(f"v_mul_u32_u24 v30, {GST}, v29")
        if part:
            k.e(f"v_add_u32 v{5+j}, v30, v28")
        else:
            k.e("v_and_b32 v28, 7, v31")
            k.e("v_lshl_add_u32 v30, v28, 4, v30")
            k.e("v_lshrrev_b32 v31, 3, v31")
            k.e(f"v_lshl_add_u32 v{5+j}, v31, 18, v30")
    if part: k.e("s_mov_b64 exec, -1")
    for j in range(NI):
        if part and j == 4: k.e("s_mov_b64 exec, 0xffffffff")
        k.e(f"s_waitcnt lgkmcnt({NI-1-j})")
        k.e(f"buffer_store_dwordx4 v[{WR+4*j}:{WR+4*j+3}], v{5+j}, s[16:19], s22 offen sc1")
    if part: k.e("s_mov_b64 exec, -1")
    k.dbg_flush(done)
    k.tl_end()
    k.label(done)
    k.e("s_endpgm")
    return k

def gen_one(n):
    return {
        'oproj': lambda: gen_gemm("oproj_kernel", 'ws', L.O, 2048*4096*2, 256, 'wo', 4096*576*2, 1152, 16, 'part', xbs=524288),
        'ffn1': lambda: gen_gemm("ffn1_kernel", 'ws', L.H2, 2048*576*2, 1152, 'w1', 576*4608*2, 9216, 9, 'silu'),
        'ffn2': lambda: gen_gemm("ffn2_kernel", 'ws', L.U, 2048*4608*2, 128, 'w2', 4608*576*2, 1152, 18, 'part', xbs=262144),
    }[n]()
```

```python
from gen_common import *

LOG2E = 0x3fb8aa3b
NLOG2E = 0xbfb8aa3b

def gen_mod():
    k = Kern("mod_kernel", (108,1,1), (1024,1,1), 8192+1024, nvgpr=40, nsgpr=102)
    k.tl_start()
    done = "mod_done"
    k.e("s_cmp_ge_u32 s2, 108")
    k.e(f"s_cbranch_scc1 {done}")
    k.srd(8, 'c', 576*2); k.srd(12, 'wmod', 576*3456*2); k.srd(16, 'ws', 3456*4, L.MOD)
    k.e("v_and_b32 v1, 15, v0")
    k.e("v_lshrrev_b32 v2, 4, v0")
    k.e("v_mul_u32_u24 v3, 9, v2")
    k.e("v_lshlrev_b32 v4, 1, v3")
    k.e("s_mov_b32 s20, 6912")
    k.e("v_mul_lo_u32 v5, v3, s20")
    k.e("s_lshl_b32 s3, s2, 6")
    k.e("v_lshl_add_u32 v5, v1, 2, v5")
    k.e("v_add_u32 v5, s3, v5")
    for i in range(9):
        k.e(f"s_mov_b32 s{21+i}, {6912*i}")
    k.srd_finish()
    for i in range(9):
        k.e(f"buffer_load_ushort v{10+i}, v4, s[8:11], 0 offen offset:{2*i}")
    for i in range(9):
        k.e(f"buffer_load_dword v{20+i}, v5, s[12:15], s{21+i} offen")
    k.e("s_waitcnt vmcnt(9)")
    k.e(f"s_mov_b32 s30, 0x{NLOG2E:x}")
    for i in range(9):
        k.e(f"v_lshlrev_b32 v{10+i}, 16, v{10+i}")
        k.e(f"v_mul_f32 v30, s30, v{10+i}")
        k.e("v_exp_f32 v30, v30")
        k.e("s_nop 0")
        k.e("v_add_f32 v30, 1.0, v30")
        k.e("v_rcp_f32 v30, v30")
        k.e("s_nop 0")
        k.e(f"v_mul_f32 v{10+i}, v{10+i}, v30")
        bf16r(k, 10+i, 10+i)
    k.e("v_mov_b32 v32, 0"); k.e("v_mov_b32 v33, 0")
    k.e("s_waitcnt vmcnt(0)")
    for i in range(9):
        k.e(f"v_lshlrev_b32 v34, 16, v{20+i}")
        k.e(f"v_and_b32 v35, 0xffff0000, v{20+i}")
        k.e(f"v_fmac_f32 v32, v{10+i}, v34")
        k.e(f"v_fmac_f32 v33, v{10+i}, v35")
    k.e("v_lshlrev_b32 v6, 7, v2")
    k.e("v_lshl_add_u32 v6, v1, 3, v6")
    k.e("ds_write_b64 v6, v[32:33]")
    k.e("s_waitcnt lgkmcnt(0)")
    k.e("s_barrier")
    k.e("v_cmp_gt_u32 vcc, 256, v0")
    k.e("s_and_saveexec_b64 s[32:33], vcc")
    k.e("s_cbranch_execz mod_skip1")
    k.e("v_and_b32 v7, 31, v0")
    k.e("v_lshrrev_b32 v8, 5, v0")
    k.e("v_lshlrev_b32 v9, 10, v8")
    k.e("v_lshl_add_u32 v9, v7, 2, v9")
    for i in range(8):
        k.e(f"ds_read_b32 v{20+i}, v9 offset:{128*i}")
    k.e("s_waitcnt lgkmcnt(0)")
    for i in range(1, 8):
        k.e(f"v_add_f32 v20, v20, v{20+i}")
    k.e("v_lshlrev_b32 v9, 2, v0")
    k.e("ds_write_b32 v9, v20 offset:8192")
    k.e("s_waitcnt lgkmcnt(0)")
    k.label("mod_skip1")
    k.e("s_mov_b64 exec, s[32:33]")
    k.e("s_barrier")
    k.e("v_cmp_gt_u32 vcc, 32, v0")
    k.e("s_and_saveexec_b64 s[32:33], vcc")
    k.e(f"s_cbranch_execz {done}")
    k.e("v_lshlrev_b32 v9, 2, v0")
    for i in range(8):
        k.e(f"ds_read_b32 v{20+i}, v9 offset:{8192+128*i}")
    k.e("s_waitcnt lgkmcnt(0)")
    for i in range(1, 8):
        k.e(f"v_add_f32 v20, v20, v{20+i}")
    bf16r(k, 20, 20)
    k.e("s_lshl_b32 s3, s2, 7")
    k.e("v_add_u32 v9, s3, v9")
    k.e("buffer_store_dword v20, v9, s[16:19], 0 offen")
    k.tl_end()
    k.label(done)
    k.e("s_endpgm")
    return k

def ln_body(k, X, CA, SA, OUT, T, smask, wait_mod=False):
    t0, t1, t2, t3, t4, t5 = T, T+1, T+2, T+3, T+4, T+5
    k.e(f"v_add_f32 v{t0}, v{X}, v{X+1}")
    for i in range(2, 10):
        k.e(f"v_add_f32 v{t0}, v{t0}, v{X+i}")
    wave_sum(k, t0, 40)
    k.e("s_mov_b32 s44, 0x3ae38e39")
    k.e(f"v_mul_f32 v{t0}, s44, v{t0}")
    k.e(f"v_mov_b32 v{t1}, 0")
    for i in range(8):
        k.e(f"v_sub_f32 v{t2}, v{X+i}, v{t0}")
        k.e(f"v_fmac_f32 v{t1}, v{t2}, v{t2}")
    k.e(f"s_mov_b64 s[46:47], exec")
    k.e(f"s_mov_b64 exec, s[{smask}:{smask+1}]")
    for i in range(8, 10):
        k.e(f"v_sub_f32 v{t2}, v{X+i}, v{t0}")
        k.e(f"v_fmac_f32 v{t1}, v{t2}, v{t2}")
    k.e(f"s_mov_b64 exec, s[46:47]")
    wave_sum(k, t1, 40)
    k.e(f"v_mul_f32 v{t1}, s44, v{t1}")
    bf16r2(k, t0, t1, t2)
    k.e("s_mov_b32 s45, 0x3727c5ac")
    k.e(f"v_add_f32 v{t1}, s45, v{t1}")
    bf16r(k, t1, t1)
    k.e(f"v_sqrt_f32 v{t1}, v{t1}")
    k.e("s_nop 0")
    bf16r(k, t1, t1)
    k.e(f"v_rcp_f32 v{t2}, v{t1}")
    k.e("s_nop 0")
    if wait_mod: k.e("s_waitcnt vmcnt(0)")
    for j in range(5):
        a, b = X+2*j, X+2*j+1
        k.e(f"v_sub_f32 v{a}, v{a}, v{t0}")
        k.e(f"v_sub_f32 v{b}, v{b}, v{t0}")
        bf16r2(k, a, b, t3)
        for r in (a, b):
            k.e(f"v_mul_f32 v{t4}, v{r}, v{t2}")
            k.e(f"v_fma_f32 v{t5}, -v{t4}, v{t1}, v{r}")
            k.e(f"v_fma_f32 v{r}, v{t5}, v{t2}, v{t4}")
        bf16r2(k, a, b, t3)
        ca, cb = CA+2*j, CA+2*j+1
        k.e(f"v_add_f32 v{ca}, 1.0, v{ca}")
        k.e(f"v_add_f32 v{cb}, 1.0, v{cb}")
        bf16r2(k, ca, cb, t3)
        k.e(f"v_mul_f32 v{a}, v{a}, v{ca}")
        k.e(f"v_mul_f32 v{b}, v{b}, v{cb}")
        bf16r2(k, a, b, t3)
        k.e(f"v_add_f32 v{a}, v{a}, v{SA+2*j}")
        k.e(f"v_add_f32 v{b}, v{b}, v{SA+2*j+1}")
        k.e(f"v_cvt_pk_bf16_f32 v{OUT+j}, v{a}, v{b}")

def gen_ln1():
    k = Kern("ln1_kernel", (512,1,1), (256,1,1), 0, nvgpr=64, nsgpr=102)
    k.tl_start()
    k.e("s_cmp_ge_u32 s2, 512")
    k.e("s_cbranch_scc1 ln1_done")
    k.srd(8, 'x', 2048*576*2); k.srd(12, 'ws', 3456*4, L.MOD); k.srd(16, 'ws', 2048*576*2, L.H1); k.srd(24, 'wq', 576*4096*2)
    k.e("v_and_b32 v1, 63, v0")
    k.e("v_lshrrev_b32 v2, 6, v0")
    k.e("s_lshl_b32 s3, s2, 2")
    k.e("v_add_u32 v2, s3, v2")
    k.e("s_movk_i32 s4, 1152")
    k.e("v_mul_lo_u32 v2, v2, s4")
    k.e("v_lshl_add_u32 v2, v1, 2, v2")
    k.e("v_lshlrev_b32 v3, 3, v1")
    k.e("v_cmp_gt_u32 s[20:21], 32, v1")
    for i in range(10):
        k.e(f"v_mov_b32 v{10+i}, 0")
    k.e("v_mov_b32 v8, 0")
    k.e("s_movk_i32 s5, 2304")
    k.srd_finish()
    for j in range(4):
        k.e(f"buffer_load_dword v{4+j}, v2, s[8:11], 0 offen offset:{256*j}")
    for j in range(4):
        k.e(f"buffer_load_dwordx2 v[{20+2*j}:{21+2*j}], v3, s[12:15], s5 offen offset:{512*j}")
        k.e(f"buffer_load_dwordx2 v[{30+2*j}:{31+2*j}], v3, s[12:15], 0 offen offset:{512*j}")
    k.e("s_mov_b64 s[22:23], exec")
    k.e("s_mov_b64 exec, s[20:21]")
    k.e("buffer_load_dword v8, v2, s[8:11], 0 offen offset:1024")
    k.e(f"buffer_load_dwordx2 v[28:29], v3, s[12:15], s5 offen offset:2048")
    k.e(f"buffer_load_dwordx2 v[38:39], v3, s[12:15], 0 offen offset:2048")
    k.e("s_mov_b64 exec, s[22:23]")
    k.e("s_mul_i32 s6, s2, 9216")
    k.e("v_lshlrev_b32 v9, 7, v0")
    k.e("v_cmp_gt_u32 vcc, 72, v0")
    k.e("s_and_saveexec_b64 s[28:29], vcc")
    k.e("s_cbranch_execz ln1_nopf")
    k.e("buffer_load_dword v60, v9, s[24:27], s6 offen")
    k.label("ln1_nopf")
    k.e("s_mov_b64 exec, s[28:29]")
    k.e("s_waitcnt vmcnt(0)")
    for j in range(5):
        k.e(f"v_lshlrev_b32 v{10+2*j}, 16, v{4+j}")
        k.e(f"v_and_b32 v{11+2*j}, 0xffff0000, v{4+j}")
    ln_body(k, 10, 20, 30, 40, 48, 20)
    for j in range(4):
        k.e(f"buffer_store_dword v{40+j}, v2, s[16:19], 0 offen offset:{256*j}")
    k.e("s_mov_b64 exec, s[20:21]")
    k.e("buffer_store_dword v44, v2, s[16:19], 0 offen offset:1024")
    k.tl_end()
    k.label("ln1_done")
    k.e("s_endpgm")
    return k

def gen_ln2(NS):
    k = Kern("ln2_kernel", (512,1,1), (256,1,1), 0, nvgpr=40+10*NS+24, nsgpr=102)
    k.tl_start()
    k.e("s_cmp_ge_u32 s2, 512")
    k.e("s_cbranch_scc1 ln2_done")
    k.srd(8, 'x', 2048*576*2); k.srd(12, 'ws', 3456*4, L.MOD); k.srd(16, 'ws', 2048*576*2, L.H2)
    k.srd(24, 'ws', 2048*576*2, L.X1); k.srd(28, 'ws', NS*2048*576*2, L.PART)
    k.e("v_and_b32 v1, 63, v0")
    k.e("v_lshrrev_b32 v2, 6, v0")
    k.e("s_lshl_b32 s3, s2, 2")
    k.e("v_add_u32 v2, s3, v2")
    k.e("s_movk_i32 s4, 1152")
    k.e("v_mul_lo_u32 v2, v2, s4")
    k.e("v_lshlrev_b32 v3, 3, v1")
    k.e("v_lshl_add_u32 v2, v1, 2, v2")
    k.e("v_cmp_gt_u32 s[20:21], 32, v1")
    P = 64
    GA = 40
    k.e("v_mov_b32 v8, 0")
    for s in range(NS):
        k.e(f"v_mov_b32 v{P+10*s+8}, 0")
        k.e(f"s_mov_b32 s{48+s}, {s*2048*576*2}")
    k.e(f"v_mov_b32 v{GA+8}, 0"); k.e(f"v_mov_b32 v{GA+9}, 0")
    k.e(f"s_movk_i32 s5, {3*2304}"); k.e(f"s_movk_i32 s6, {4*2304}"); k.e(f"s_movk_i32 s7, {2*2304}")
    k.srd_finish()
    for s in range(NS):
        for j in range(4):
            k.e(f"buffer_load_dword v{P+10*s+2*j}, v2, s[28:31], s{48+s} offen offset:{256*j}")
    for j in range(4):
        k.e(f"buffer_load_dword v{4+j}, v2, s[8:11], 0 offen offset:{256*j}")
    for j in range(4):
        k.e(f"buffer_load_dwordx2 v[{GA+2*j}:{GA+2*j+1}], v3, s[12:15], s7 offen offset:{512*j}")
    for j in range(4):
        k.e(f"buffer_load_dwordx2 v[{20+2*j}:{21+2*j}], v3, s[12:15], s6 offen offset:{512*j}")
        k.e(f"buffer_load_dwordx2 v[{30+2*j}:{31+2*j}], v3, s[12:15], s5 offen offset:{512*j}")
    k.e("s_mov_b64 s[22:23], exec")
    k.e("s_mov_b64 exec, s[20:21]")
    for s in range(NS):
        k.e(f"buffer_load_dword v{P+10*s+8}, v2, s[28:31], s{48+s} offen offset:1024")
    k.e("buffer_load_dword v8, v2, s[8:11], 0 offen offset:1024")
    k.e(f"buffer_load_dwordx2 v[{GA+8}:{GA+9}], v3, s[12:15], s7 offen offset:2048")
    k.e(f"buffer_load_dwordx2 v[28:29], v3, s[12:15], s6 offen offset:2048")
    k.e(f"buffer_load_dwordx2 v[38:39], v3, s[12:15], s5 offen offset:2048")
    k.e("s_mov_b64 exec, s[22:23]")
    k.e("s_waitcnt vmcnt(0)")
    for s in range(NS):
        for j in range(5):
            k.e(f"v_and_b32 v{P+10*s+2*j+1}, 0xffff0000, v{P+10*s+2*j}")
            k.e(f"v_lshlrev_b32 v{P+10*s+2*j}, 16, v{P+10*s+2*j}")
    for i in range(10):
        for s in range(1, NS):
            k.e(f"v_add_f32 v{P+i}, v{P+i}, v{P+10*s+i}")
    for j in range(5):
        a, b = P+2*j, P+2*j+1
        bf16r2(k, a, b, 50)
        k.e(f"v_mul_f32 v{a}, v{a}, v{GA+2*j}")
        k.e(f"v_mul_f32 v{b}, v{b}, v{GA+2*j+1}")
        bf16r2(k, a, b, 50)
        k.e(f"v_lshlrev_b32 v{10+2*j}, 16, v{4+j}")
        k.e(f"v_and_b32 v{11+2*j}, 0xffff0000, v{4+j}")
        k.e(f"v_add_f32 v{10+2*j}, v{10+2*j}, v{a}")
        k.e(f"v_add_f32 v{11+2*j}, v{11+2*j}, v{b}")
        k.e(f"v_cvt_pk_bf16_f32 v{4+j}, v{10+2*j}, v{11+2*j}")
        k.e(f"v_lshlrev_b32 v{10+2*j}, 16, v{4+j}")
        k.e(f"v_and_b32 v{11+2*j}, 0xffff0000, v{4+j}")
    for j in range(4):
        k.e(f"buffer_store_dword v{4+j}, v2, s[24:27], 0 offen offset:{256*j}")
    k.e("s_mov_b64 exec, s[20:21]")
    k.e("buffer_store_dword v8, v2, s[24:27], 0 offen offset:1024")
    k.e("s_mov_b64 exec, s[22:23]")
    ln_body(k, 10, 20, 30, 40, 52, 20)
    for j in range(4):
        k.e(f"buffer_store_dword v{40+j}, v2, s[16:19], 0 offen offset:{256*j}")
    k.e("s_mov_b64 exec, s[20:21]")
    k.e("buffer_store_dword v44, v2, s[16:19], 0 offen offset:1024")
    k.tl_end()
    k.label("ln2_done")
    k.e("s_endpgm")
    return k

def gen_final(NS):
    k = Kern("final_kernel", (1152,1,1), (256,1,1), 0, nvgpr=16+4*NS+16, nsgpr=102)
    k.tl_start()
    k.e("s_cmp_ge_u32 s2, 1152")
    k.e("s_cbranch_scc1 final_done")
    k.srd(8, 'ws', 2048*576*2, L.X1); k.srd(12, 'ws', 3456*4, L.MOD); k.srd(16, 'out', 2048*576*2)
    k.srd(28, 'ws', NS*2048*576*2, L.PART2)
    k.e("s_lshl_b32 s3, s2, 8")
    k.e("v_add_u32 v1, s3, v0")
    k.e("s_mov_b32 s4, 0x1c71c72")
    k.e("v_mul_hi_u32 v2, v1, s4")
    k.e("s_movk_i32 s5, 144")
    k.e("v_mul_lo_u32 v2, v2, s5")
    k.e("v_sub_u32 v2, v1, v2")
    k.e("v_lshlrev_b32 v2, 4, v2")
    k.e("v_lshlrev_b32 v3, 4, v1")
    k.e("v_lshlrev_b32 v4, 3, v1")
    for s in range(NS):
        k.e(f"s_mov_b32 s{48+s}, {s*2048*576*2}")
    k.e(f"s_movk_i32 s6, {5*576*4}")
    k.srd_finish()
    P = 16
    for s in range(NS):
        k.e(f"buffer_load_dwordx2 v[{P+4*s}:{P+4*s+1}], v4, s[28:31], s{48+s} offen")
    k.e("buffer_load_dwordx2 v[6:7], v4, s[8:11], 0 offen")
    k.e("buffer_load_dwordx4 v[8:11], v2, s[12:15], s6 offen")
    k.e("s_waitcnt vmcnt(0)")
    for s in range(NS):
        b = P + 4*s
        k.e(f"v_and_b32 v{b+3}, 0xffff0000, v{b+1}")
        k.e(f"v_lshlrev_b32 v{b+2}, 16, v{b+1}")
        k.e(f"v_and_b32 v{b+1}, 0xffff0000, v{b}")
        k.e(f"v_lshlrev_b32 v{b}, 16, v{b}")
    for i in range(4):
        for s in range(1, NS):
            k.e(f"v_add_f32 v{P+i}, v{P+i}, v{P+4*s+i}")
    T = P + 4*NS
    for j in range(2):
        a, b = P+2*j, P+2*j+1
        bf16r2(k, a, b, T)
        k.e(f"v_mul_f32 v{a}, v{a}, v{8+2*j}")
        k.e(f"v_mul_f32 v{b}, v{b}, v{9+2*j}")
        bf16r2(k, a, b, T)
        k.e(f"v_lshlrev_b32 v{T+1}, 16, v{6+j}")
        k.e(f"v_and_b32 v{T+2}, 0xffff0000, v{6+j}")
        k.e(f"v_add_f32 v{a}, v{a}, v{T+1}")
        k.e(f"v_add_f32 v{b}, v{b}, v{T+2}")
        k.e(f"v_cvt_pk_bf16_f32 v{12+j}, v{a}, v{b}")
    k.e("buffer_store_dwordx2 v[12:13], v4, s[16:19], 0 offen")
    k.tl_end()
    k.label("final_done")
    k.e("s_endpgm")
    return k
```

```python
import os
from gen_common import *
from gen_attn import VM, mf, vr, ar

NLOG2E = 0xbfb8aa3b
NSPLIT = 4

def silu_group(k, b, T, waddr, off):
    for j in range(4):
        bf16r2(k, b+2*j, b+2*j+1, T+j)
    for j in range(8):
        k.e(f"v_mul_f32 v{T+4+j}, s25, v{b+j}")
    for j in range(8):
        k.e(f"v_exp_f32 v{T+4+j}, v{T+4+j}")
    for j in range(8):
        k.e(f"v_add_f32 v{T+4+j}, 1.0, v{T+4+j}")
    for j in range(8):
        k.e(f"v_rcp_f32 v{T+4+j}, v{T+4+j}")
    for j in range(8):
        k.e(f"v_mul_f32 v{b+j}, v{b+j}, v{T+4+j}")
    for j in range(4):
        k.e(f"v_cvt_pk_bf16_f32 v{T+j}, v{b+2*j}, v{b+2*j+1}")
    k.e("s_nop 1")
    k.e(f"v_permlane32_swap_b32 v{T}, v{T+2}")
    k.e(f"v_permlane32_swap_b32 v{T+1}, v{T+3}")
    k.e(f"ds_write_b128 v{waddr}, v[{T}:{T+3}] offset:{off}")

RAW = 81920
def silu_store_phase(k, nbs, WR):
    if len(nbs) == 4:
        k.e("v_bfe_u32 v28, v1, 2, 2")
        k.e(f"v_mov_b32 v29, {nbs[0]}")
        for t in range(1, 4):
            k.e(f"v_cmp_eq_u32 vcc, {t}, v28")
            k.e("s_nop 1")
            k.e(f"v_cndmask_b32 v29, v29, {nbs[t]}, vcc") if False else k.e(f"v_mov_b32 v30, {nbs[t]}")
            k.e("v_cndmask_b32 v29, v29, v30, vcc")
        k.e("v_and_b32 v28, 3, v1")
        k.e("v_lshl_add_u32 v28, v29, 2, v28")
        k.e("v_lshrrev_b32 v29, 4, v1")
        nj = 4; rstep = 4
    else:
        k.e("v_and_b32 v28, 3, v1")
        k.e(f"v_add_u32 v28, {nbs[0]*4}, v28")
        k.e("v_lshrrev_b32 v29, 2, v1")
        nj = 1; rstep = 16
    k.e("s_lshl_b32 s26, s5, 4")
    k.e("v_add_u32 v29, s26, v29")
    k.e("v_mul_u32_u24 v30, 592, v29")
    k.e("v_lshl_add_u32 v30, v28, 4, v30")
    k.e("v_add_u32 v31, s30, v28")
    k.e("v_lshlrev_b32 v29, 7, v29")
    k.e("v_and_b32 v28, 7, v31")
    k.e("v_lshl_add_u32 v29, v28, 4, v29")
    k.e("v_lshrrev_b32 v31, 3, v31")
    k.e("v_lshl_add_u32 v31, v31, 18, v29")
    for j in range(nj):
        k.e(f"ds_read_b128 v[{WR+4*j}:{WR+4*j+3}], v30 offset:{592*rstep*j}")
    for j in range(nj):
        k.e(f"s_waitcnt lgkmcnt({nj-1-j})")
        k.e(f"buffer_store_dwordx4 v[{WR+4*j}:{WR+4*j+3}], v31, s[16:19], s22 offen offset:{128*rstep*j} sc1")

def gen_gemm(name, xk, xoff, xsize, ldx, wk, wsize, ldw, nstage, mode, xbs=0):
    part = mode == 'part'
    TM = 64 if part else 128
    XB = TM * 128
    STAGE = XB + 36864
    KS = [0, 1] if part else [0, 1, 2, 3]
    MPS = 9 * len(KS)
    PFD = 8; NR = 10
    k = Kern(name, (256,1,1), (512,1,1), 3*STAGE, nvgpr=256, nsgpr=102)
    k.tl_start()
    ACC = 100; WR = 32; XR = 80
    XA = 4; WA = 8; XD = 10; WD = 14
    done = f"{name}_done"
    k.e("s_cmp_ge_u32 s2, 256")
    k.e(f"s_cbranch_scc1 {done}")
    k.srd(8, xk, xsize, xoff); k.srd(12, wk, wsize)
    if part: k.srd(16, 'ws', NSPLIT*2048*576*2, L.PART2 if name.startswith('ffn2') else L.PART)
    else: k.srd(16, 'ws', 2048*4608*2, L.U)
    k.dbg_init(os.environ.get('DBG','0')=='1')
    k.e("v_lshrrev_b32 v4, 6, v0")
    k.e("v_and_b32 v1, 63, v0")
    k.e("v_readfirstlane_b32 s5, v4")
    k.e("v_and_b32 v2, 31, v0")
    k.e("v_lshrrev_b32 v3, 5, v1")
    k.e("s_and_b32 s6, s2, 7")
    k.e("s_lshr_b32 s7, s2, 3")
    if part:
        k.e("s_and_b32 s3, s6, 1"); k.e("s_lshl_b32 s3, s3, 4"); k.e("s_and_b32 s24, s7, 15"); k.e("s_add_u32 s3, s3, s24")
        k.e("s_lshr_b32 s4, s7, 4")
        k.e("s_lshr_b32 s6, s6, 1")
        k.e(f"s_mul_i32 s23, s6, {nstage*64}")
    else:
        k.e("s_and_b32 s3, s6, 1"); k.e("s_lshl_b32 s3, s3, 3"); k.e("s_and_b32 s24, s7, 7"); k.e("s_add_u32 s3, s3, s24")
        k.e("s_lshr_b32 s4, s6, 1"); k.e("s_lshl_b32 s4, s4, 2"); k.e("s_lshr_b32 s24, s7, 3"); k.e("s_add_u32 s4, s4, s24")
        k.e("s_mov_b32 s23, 0")
    k.e(f"s_mul_i32 s24, s3, {TM}")
    if part:
        k.e("s_mul_i32 s22, s24, 1152"); k.e(f"s_mul_i32 s25, s6, {2048*1152}"); k.e("s_add_u32 s22, s22, s25")
        k.e("s_mul_i32 s25, s4, 576"); k.e("s_add_u32 s22, s22, s25")
    else:
        k.e("s_lshl_b32 s22, s24, 7"); k.e("s_mul_i32 s30, s4, 36")
    k.srd_finish()
    k.stamp()
    k.e("s_cmp_ge_u32 s5, 4")
    k.e(f"s_cbranch_scc1 {name}_loader")
    if part:
        k.e("s_and_b32 s26, s5, 1")
        k.e("s_lshr_b32 s27, s5, 1")
        k.e("s_lshl_b32 s26, s26, 12")
        k.e("s_lshl_b32 s28, s27, 2")
        k.e(f"s_mul_i32 s27, s27, {2*9216}")
    else:
        k.e("s_lshl_b32 s26, s5, 12")
        k.e("s_mov_b32 s28, 0"); k.e("s_mov_b32 s27, 0")
    k.e("v_bfe_u32 v28, v2, 1, 3")
    k.e("v_lshlrev_b32 v29, 7, v2")
    k.e("v_add_u32 v29, s26, v29")
    k.e("v_add_u32 v31, s28, v3")
    for i in range(len(KS)):
        k.e(f"v_add_u32 v30, {2*i}, v31")
        k.e("v_xor_b32 v30, v30, v28")
        k.e(f"v_lshl_add_u32 v{XA+i}, v30, 4, v29")
    k.e("v_bfe_u32 v28, v1, 2, 2")
    k.e("v_lshl_add_u32 v28, v3, 3, v28")
    k.e("v_mul_u32_u24 v28, 576, v28")
    k.e("v_bfe_u32 v29, v1, 4, 1")
    k.e("v_lshl_add_u32 v28, v29, 5, v28")
    k.e("v_and_b32 v29, 3, v1")
    k.e("v_lshl_add_u32 v28, v29, 3, v28")
    k.e(f"v_add_u32 v{WA}, s27, v28")
    NM = nstage * MPS
    BAR = MPS - PFD + 3
    def bar_gap(s): return -1 if s == 0 else (s-1)*MPS + BAR - 1
    issue = {}
    for F in range(NM):
        issue.setdefault(max(F - PFD, bar_gap(F // MPS)), []).append(('W', F))
    nk = len(KS)
    for s in range(nstage):
        for i in range(nk):
            issue.setdefault(max(s*MPS + i*9 - PFD - 1, bar_gap(s)), []).insert(0, ('X', s*nk+i))
    dsq = []; cur = [0]
    def set_stage(s):
        if cur[0] != s:
            d = ((s % 3) - (cur[0] % 3)) * STAGE
            for r in list(range(XA, XA+nk)) + [WA]:
                k.e(f"v_add_u32 v{r}, {d}, v{r}" if d > 0 else f"v_subrev_u32 v{r}, {-d}, v{r}")
            cur[0] = s
    def do_reads(g):
        for kind, idx in issue.get(g, []):
            if kind == 'W':
                s, rem = idx // MPS, idx % MPS
                i, nb = rem // 9, rem % 9
                set_stage(s)
                r = WR + 4 * (idx % NR)
                off = XB + nb*64 + i*9216
                k.e(f"ds_read_b64_tr_b16 v[{r}:{r+1}], v{WA} offset:{off}")
                k.e(f"ds_read_b64_tr_b16 v[{r+2}:{r+3}], v{WA} offset:{off+2304}")
                dsq.extend([('W', idx)] * 2)
            else:
                s, i = idx // nk, idx % nk
                set_stage(s)
                r = XR + 4 * (idx % 4)
                k.e(f"ds_read_b128 v[{r}:{r+3}], v{XA+i}")
                dsq.append(('X', idx))
    def need(tags):
        i = max(i for i, t in enumerate(dsq) if t in tags)
        return len(dsq) - 1 - i
    k.e("s_barrier")
    k.stamp()
    do_reads(-1)
    for F in range(NM):
        s, rem = F // MPS, F % MPS
        i, nb = rem // 9, rem % 9
        k.e(f"s_waitcnt lgkmcnt({min(need([('W', F), ('X', s*nk+i)]), 15)})")
        d = ACC + 16*nb
        k.e(mf(vr(d, 16), vr(WR + 4*(F % NR), 4), vr(XR + 4*((s*nk+i) % 4), 4), "0" if F < 9 else vr(d, 16)))
        if rem == BAR - 1 and s + 1 < nstage:
            k.e("s_waitcnt lgkmcnt(0)")
            k.e("s_barrier")
        do_reads(F)
    k.stamp()
    k.e("s_nop 15")
    k.e("s_barrier")
    if part: LST = 1168
    else: LST = 592
    k.e("s_lshr_b32 s26, s26, 7")
    k.e("v_add_u32 v4, s26, v2")
    k.e(f"v_mul_u32_u24 v4, {LST}, v4")
    k.e("v_lshl_add_u32 v4, v3, 4, v4")
    if part:
        l1 = k.newlabel("wk1"); l2 = k.newlabel("wkj")
        k.e("s_cmp_lg_u32 s28, 0")
        k.e(f"s_cbranch_scc1 {l1}")
        k.e("s_barrier")
        k.e("v_add_u32 v5, s26, v2")
        k.e("v_mul_u32_u24 v5, 592, v5")
        k.e("v_lshl_add_u32 v5, v3, 4, v5")
        k.e(f"v_add_u32 v5, {RAW}, v5")
        for h in range(3):
            for i in range(12):
                idx = h*12 + i
                k.e(f"ds_read_b128 v[{WR+4*i}:{WR+4*i+3}], v4 offset:{128*(idx//4)+32*(idx%4)}")
            k.e("s_waitcnt lgkmcnt(0)")
            for ip in range(6):
                b0 = ACC + 4*(h*12 + 2*ip)
                for j in range(8):
                    k.e(f"v_add_f32 v{b0+j}, v{b0+j}, v{WR+8*ip+j}")
                T = XR + 4*(ip % 2)
                for j in range(4):
                    k.e(f"v_cvt_pk_bf16_f32 v{T+j}, v{b0+2*j}, v{b0+2*j+1}")
                k.e("s_nop 1")
                k.e(f"v_permlane32_swap_b32 v{T}, v{T+2}")
                k.e(f"v_permlane32_swap_b32 v{T+1}, v{T+3}")
                idx = h*12 + 2*ip
                k.e(f"ds_write_b128 v5, v[{T}:{T+3}] offset:{64*(idx//4)+32*((idx%4)//2)}")
        k.e("s_waitcnt lgkmcnt(0)")
        k.e(f"s_branch {l2}")
        k.label(l1)
        for idx in range(36):
            k.e(f"ds_write_b128 v4, v[{ACC+4*idx}:{ACC+4*idx+3}] offset:{128*(idx//4)+32*(idx%4)}")
        k.e("s_waitcnt lgkmcnt(0)")
        k.e("s_barrier")
        k.label(l2)
    else:
        k.e(f"s_lshl_b32 s25, s5, 14")
        k.e("v_lshlrev_b32 v5, 4, v1")
        k.e("v_add_u32 v5, s25, v5")
        k.e(f"v_add_u32 v5, {RAW}, v5")
        for i in range(16):
            r = ACC + 80 + 4*i
            k.e(f"ds_write_b128 v5, v[{r}:{r+3}] offset:{1024*i}")
        k.e("s_waitcnt lgkmcnt(0)")
        k.e("s_barrier")
        k.e(f"s_mov_b32 s25, 0x{NLOG2E:x}")
        n = 0
        for ph, (mine, alls) in enumerate([((0, 1), (0, 1, 5, 6)), ((2, 3), (2, 3, 7, 8)), ((4,), (4,))]):
            for nb in mine:
                for gp in range(2):
                    silu_group(k, ACC + 16*nb + 8*gp, 48 + 16 * (n % 3), 4, 64*nb+32*gp); n += 1
            k.e("s_waitcnt lgkmcnt(0)")
            k.e("s_barrier")
            silu_store_phase(k, alls, WR)
        k.e(f"s_branch {name}_fin")
    k.e(f"s_branch {name}_store")
    k.label(f"{name}_loader")
    k.e("s_sub_u32 s5, s5, 4")
    nxc = TM // 32
    k.e(f"s_mul_i32 s25, s5, {TM//4}"); k.e("s_add_u32 s25, s25, s24")
    k.e(f"s_mul_i32 s20, s25, {ldx}")
    if xbs:
        k.e(f"s_lshr_b32 s25, s23, {(ldx//2).bit_length()-1}"); k.e(f"s_mul_i32 s25, s25, {xbs}")
    else:
        k.e("s_lshl_b32 s25, s23, 1")
    k.e("s_add_u32 s20, s20, s25")
    k.e("s_lshl_b32 s25, s5, 4"); k.e("s_add_u32 s25, s25, s23"); k.e(f"s_mul_i32 s21, s25, {ldw}")
    k.e("s_mul_i32 s25, s4, 576"); k.e("s_add_u32 s21, s21, s25")
    k.e(f"s_mul_i32 s26, s5, {nxc*1024}")
    k.e("s_mul_i32 s27, s5, 9216"); k.e(f"s_add_u32 s27, s27, {XB}")
    k.e("v_lshrrev_b32 v28, 3, v1")
    k.e("v_and_b32 v29, 7, v1")
    k.e("v_lshrrev_b32 v30, 4, v1")
    k.e(f"s_mov_b32 s25, {ldx}")
    for c in range(nxc):
        k.e(f"v_add_u32 v31, {4*(c&1)}, v30")
        k.e("v_xor_b32 v31, v31, v29")
        k.e("v_lshlrev_b32 v31, 4, v31")
        k.e(f"v_add_u32 v{XD+c}, {8*c}, v28")
        k.e(f"v_mul_lo_u32 v{XD+c}, v{XD+c}, s25")
        k.e(f"v_add_u32 v{XD+c}, v{XD+c}, v31")
        if c: k.e(f"v_subrev_u32 v{XD+c}, {1024*c}, v{XD+c}")
    for P in range(576): assert (P * 1821) >> 16 == P // 36
    k.e(f"s_mov_b32 s25, {ldw}")
    for j in range(9):
        k.e(f"v_add_u32 v28, {64*j}, v1")
        k.e("v_mul_u32_u24 v29, 1821, v28")
        k.e("v_lshrrev_b32 v29, 16, v29")
        k.e("v_mul_u32_u24 v30, 36, v29")
        k.e("v_sub_u32 v28, v28, v30")
        k.e(f"v_mul_lo_u32 v{WD+j}, v29, s25")
        k.e(f"v_lshl_add_u32 v{WD+j}, v28, 4, v{WD+j}")
        if j % 4: k.e(f"v_subrev_u32 v{WD+j}, {1024*(j%4)}, v{WD+j}")
    k.e("v_lshrrev_b32 v28, 2, v1")
    k.e("v_mul_lo_u32 v24, v28, s25")
    k.e("v_and_b32 v28, 3, v1")
    k.e("v_lshl_add_u32 v24, v28, 7, v24")
    k.e("v_and_b32 v28, 15, v1")
    k.e("v_mul_lo_u32 v25, v28, s25")
    k.e("v_add_u32 v25, 512, v25")
    k.e(f"v_and_b32 v28, {TM//4-1}, v1")
    k.e(f"s_mov_b32 s25, {ldx}")
    k.e("v_mul_lo_u32 v26, v28, s25")
    PFS = 3
    k.e(f"s_add_u32 s28, s20, {128*3}")
    k.e(f"s_add_u32 s29, s21, {64*ldw*3}")
    vm = VM()
    def pf(s):
        if s >= nstage or os.environ.get('PF','0') != '1': return
        k.e("buffer_load_dword v27, v26, s[8:11], s28 offen"); vm.issue('pf')
        k.e("buffer_load_dword v27, v24, s[12:15], s29 offen"); vm.issue('pf')
        k.e("buffer_load_dword v27, v25, s[12:15], s29 offen"); vm.issue('pf')
        k.e("s_add_u32 s28, s28, 128")
        k.e(f"s_add_u32 s29, s29, {64*ldw}")
    def dma(s):
        b = (s % 3) * STAGE
        k.e(f"s_add_u32 m0, s26, {b}"); k.e("s_nop 0")
        for c in range(nxc):
            k.e(f"buffer_load_dwordx4 v{XD+c}, s[8:11], s20 offen offset:{1024*c} lds"); vm.issue(s)
        for j in range(9):
            if j % 4 == 0:
                k.e(f"s_add_u32 m0, s27, {b + 4096*(j//4)}"); k.e("s_nop 0")
            k.e(f"buffer_load_dwordx4 v{WD+j}, s[12:15], s21 offen offset:{1024*(j%4)} lds"); vm.issue(s)
        if xbs and ((s + 1) * 128) % ldx == 0:
            k.e(f"s_add_u32 s20, s20, {xbs - ldx + 128}")
        else:
            k.e("s_add_u32 s20, s20, 128")
        k.e(f"s_add_u32 s21, s21, {64*ldw}")
    for s in range(3): dma(s)
    for s in range(3, 3 + PFS): pf(s)
    k.e(f"s_waitcnt vmcnt({vm.wait_n(0)})")
    k.e("s_barrier")
    for s in range(nstage - 1):
        k.e(f"s_waitcnt vmcnt({vm.wait_n(s+1)})")
        k.e("s_barrier")
        if s + 3 < nstage: dma(s + 3)
        pf(s + 3 + PFS)
    k.e("s_barrier")
    k.e("s_barrier")
    if not part:
        k.e(f"s_lshl_b32 s25, s5, 14")
        k.e("v_lshlrev_b32 v5, 4, v1")
        k.e("v_add_u32 v5, s25, v5")
        k.e(f"v_add_u32 v5, {RAW}, v5")
        for i in range(16):
            r = ACC + 4*i
            k.e(f"ds_read_b128 v[{r}:{r+3}], v5 offset:{1024*i}")
        k.e("s_lshl_b32 s26, s5, 5")
        k.e("v_add_u32 v4, s26, v2")
        k.e("v_mul_u32_u24 v4, 592, v4")
        k.e("v_lshl_add_u32 v4, v3, 4, v4")
        k.e(f"s_mov_b32 s25, 0x{NLOG2E:x}")
        k.e("s_add_u32 s5, s5, 4")
        k.e("s_waitcnt lgkmcnt(0)")
        n = 0
        for ph, (mine, alls) in enumerate([((0, 1), (0, 1, 5, 6)), ((2, 3), (2, 3, 7, 8)), ((), (4,))]):
            for nb in mine:
                for gp in range(2):
                    silu_group(k, ACC + 16*nb + 8*gp, 48 + 16 * (n % 3), 4, 64*(nb+5)+32*gp); n += 1
            k.e("s_waitcnt lgkmcnt(0)")
            k.e("s_barrier")
            silu_store_phase(k, alls, WR)
        k.e(f"s_branch {name}_fin")
    k.e("s_add_u32 s5, s5, 4")
    k.label(f"{name}_store")
    k.e("s_barrier")
    PCS, MAG, LST = 36, 1821, 592
    GST = 1152 if part else 128
    RPW = 8 if part else 16
    NI = 5 if part else 9
    k.e(f"s_mul_i32 s25, s5, {RPW*LST}")
    if part: k.e(f"s_add_u32 s25, s25, {RAW}")
    k.e(f"s_mul_i32 s26, s5, {RPW*GST}")
    k.e("s_add_u32 s22, s22, s26")
    for j in range(NI):
        if part and j == 4: k.e("s_mov_b64 exec, 0xffffffff")
        k.e(f"v_add_u32 v28, {64*j}, v1")
        k.e(f"v_mul_u32_u24 v29, {MAG}, v28")
        k.e("v_lshrrev_b32 v29, 16, v29")
        k.e(f"v_mul_u32_u24 v30, {PCS}, v29")
        k.e("v_sub_u32 v28, v28, v30")
        if not part: k.e("v_add_u32 v31, s30, v28")
        k.e("v_lshlrev_b32 v28, 4, v28")
        k.e(f"v_mul_u32_u24 v30, {LST}, v29")
        k.e("v_add3_u32 v30, v30, v28, s25")
        k.e(f"ds_read_b128 v[{WR+4*j}:{WR+4*j+3}], v30")
        k.e(f"v_mul_u32_u24 v30, {GST}, v29")
        if part:
            k.e(f"v_add_u32 v{5+j}, v30, v28")
        else:
            k.e("v_and_b32 v28, 7, v31")
            k.e("v_lshl_add_u32 v30, v28, 4, v30")
            k.e("v_lshrrev_b32 v31, 3, v31")
            k.e(f"v_lshl_add_u32 v{5+j}, v31, 18, v30")
    if part: k.e("s_mov_b64 exec, -1")
    for j in range(NI):
        if part and j == 4: k.e("s_mov_b64 exec, 0xffffffff")
        k.e(f"s_waitcnt lgkmcnt({NI-1-j})")
        k.e(f"buffer_store_dwordx4 v[{WR+4*j}:{WR+4*j+3}], v{5+j}, s[16:19], s22 offen sc1")
    if part: k.e("s_mov_b64 exec, -1")
    k.label(f"{name}_fin")
    k.dbg_flush(done)
    k.tl_end()
    k.label(done)
    k.e("s_endpgm")
    return k

def gen_one(n):
    return {
        'oproj': lambda: gen_gemm("oproj_kernel", 'ws', L.O, 2048*4096*2, 256, 'wo', 4096*576*2, 1152, 16, 'part', xbs=524288),
        'ffn1': lambda: gen_gemm("ffn1_kernel", 'ws', L.H2, 2048*576*2, 1152, 'w1', 576*4608*2, 9216, 9, 'silu'),
        'ffn2': lambda: gen_gemm("ffn2_kernel", 'ws', L.U, 2048*4608*2, 128, 'w2', 4608*576*2, 1152, 18, 'part', xbs=262144),
    }[n]()
```

```python
from gen_common import *

class VM:
    def __init__(self): self.q = []
    def issue(self, tag): self.q.append(tag)
    def wait_n(self, tag):
        idx = max(i for i, t in enumerate(self.q) if t == tag)
        return len(self.q) - 1 - idx

QSCALE = 0x3e0293ee
THR = 0x4b800000

vLANE, vL31, vHALF = 1, 2, 3
KADDR = 8
VADDR = 16
KDMA = 20
VDMA, WDMA = 24, 25
LSUM = 26
LT = 28
TMP = 30
SA_, SB_ = 40, 72
PA_, PB_ = 104, 120
NEGM = 136
RING = 168
WADDR = 200
HDMA = 204
WQD = 232
HADDR = 236
HR = 240
PFV = 38
XT = 208
QA = 128
PF = 6
import os
QDR = int(os.environ.get('QDR', '1'))

def mf(D, A, B, C):
    return f"v_mfma_f32_32x32x16_bf16 {D}, {A}, {B}, {C}"
def vr(b, n): return f"v[{b}:{b+n-1}]"
def ar(b, n): return f"a[{b}:{b+n-1}]"

def softmax_instrs(S, P, first_done=None):
    out = []
    for q in range(2):
        for pr in range(8):
            ta = TMP + (pr % 2) * 2; tb = ta + 1
            s = S + 16 * q + 2 * pr
            out.append((f"v_exp_f32 v{ta}, v{s}", 8))
            out.append((f"v_exp_f32 v{tb}, v{s+1}", 8))
            if pr == 0:
                out.append(("s_nop 0", 4))
                out.append((f"v_add_f32 v{LT+q}, v{ta}, v{tb}", 4))
            else:
                out.append((f"v_add_f32 v{LT+q}, v{LT+q}, v{ta}", 4))
                out.append((f"v_add_f32 v{LT+q}, v{LT+q}, v{tb}", 4))
            out.append((f"v_cvt_pk_bf16_f32 v{P+8*q+pr}, v{ta}, v{tb}", 4))
    return out

def rowmax(k, S, q, t, t2):
    b = S + 16 * q
    k.e(f"v_max3_f32 v{t}, v{b}, v{b+1}, v{b+2}")
    for i in range(3, 15, 2):
        k.e(f"v_max3_f32 v{t}, v{t}, v{b+i}, v{b+i+1}")
    k.e(f"v_max_f32 v{t}, v{t}, v{b+15}")
    k.e(f"v_mov_b32 v{t2}, v{t}")
    k.e("s_nop 1")
    k.e(f"v_permlane32_swap_b32 v{t2}, v{t}")
    k.e("s_nop 1")
    k.e(f"v_max_f32 v{t}, v{t}, v{t2}")

def rare_path(k, lab, ret, SX, SY, PX):
    k.label(lab)
    k.e("s_nop 15"); k.e("s_nop 15")
    for q in range(2):
        t, t2, f = XT, XT + 1, XT + 2
        rowmax(k, SX, q, t, t2)
        k.e(f"v_max_f32 v{t}, 0, v{t}")
        k.e(f"v_sub_f32 v{f}, 0, v{t}")
        k.e(f"v_exp_f32 v{f}, v{f}")
        k.e("s_nop 0")
        k.e(f"v_mul_f32 v{LSUM+q}, v{LSUM+q}, v{f}")
        for i in range(64):
            k.e(f"v_accvgpr_read_b32 v{t2}, a{64*q+i}")
            k.e(f"v_mul_f32 v{t2}, v{t2}, v{f}")
            k.e(f"v_accvgpr_write_b32 a{64*q+i}, v{t2}")
        for i in range(16):
            k.e(f"v_sub_f32 v{NEGM+16*q+i}, v{NEGM+16*q+i}, v{t}")
            k.e(f"v_sub_f32 v{SX+16*q+i}, v{SX+16*q+i}, v{t}")
            k.e(f"v_sub_f32 v{SY+16*q+i}, v{SY+16*q+i}, v{t}")
    for ins, _ in softmax_instrs(SX, PX):
        k.e(ins)
    k.e("s_nop 1")
    k.e(f"s_branch {ret}")

def gen_attn(dbg=False):
    k = Kern("attn_kernel", (256,1,1), (256,1,1), 147456, nvgpr=256, nagpr=256)
    k.tl_start()
    k.e("s_cmp_ge_u32 s2, 256")
    k.e("s_cbranch_scc1 attn_done")
    k.srd(8, 'k', 32*2048*128*2); k.srd(12, 'v', 32*2048*128*2); k.srd(16, 'wq', 576*4096*2)
    k.srd(20, 'ws', 2048*576*2, L.H1); k.srd(24, 'ws', 2048*4096*2, L.O)
    k.srd(40, 'wo', 4096*576*2); k.srd(44, 'w1', 576*4608*2); k.srd(48, 'w2', 4608*576*2)
    k.e("s_and_b32 s3, s2, 31")
    k.e("s_lshr_b32 s4, s2, 5")
    k.e("v_lshrrev_b32 v4, 6, v0")
    k.e(f"v_and_b32 v{vLANE}, 63, v0")
    k.e("v_readfirstlane_b32 s5, v4")
    k.e(f"v_and_b32 v{vL31}, 31, v0")
    k.e(f"v_lshrrev_b32 v{vHALF}, 5, v{vLANE}")
    k.e(f"v_and_b32 v4, 15, v{vL31}")
    k.e(f"v_lshlrev_b32 v5, 8, v{vL31}")
    for ks in range(8):
        k.e(f"v_add_u32 v6, {2*ks}, v{vHALF}")
        k.e("v_xor_b32 v6, v6, v4")
        k.e(f"v_lshl_add_u32 v{KADDR+ks}, v6, 4, v5")
    k.e(f"v_bfe_u32 v4, v{vLANE}, 2, 2")
    k.e(f"v_and_b32 v5, 3, v{vLANE}")
    k.e(f"v_bfe_u32 v6, v{vLANE}, 4, 1")
    k.e("v_lshlrev_b32 v5, 3, v5")
    k.e("v_lshl_add_u32 v5, v6, 5, v5")
    k.e("v_lshl_add_u32 v5, v4, 8, v5")
    for db in range(4):
        k.e(f"v_xor_b32 v6, {db}, v4")
        k.e("v_lshl_add_u32 v6, v6, 6, v5")
        k.e(f"v_lshl_add_u32 v{WADDR+db}, v{vHALF}, 11, v6")
        k.e(f"v_lshl_add_u32 v{VADDR+db}, v{vHALF}, 10, v6")
        k.e(f"v_add_u32 v{VADDR+db}, 0x10000, v{VADDR+db}")
    k.e(f"v_lshrrev_b32 v4, 4, v{vLANE}")
    k.e(f"v_and_b32 v5, 15, v{vLANE}")
    for c in range(4):
        k.e(f"v_add_u32 v6, {4*c}, v4")
        k.e("v_xor_b32 v6, v6, v5")
        k.e("v_lshlrev_b32 v6, 4, v6")
        k.e(f"v_lshl_add_u32 v{KDMA+c}, v4, 8, v6")
    k.e("v_lshlrev_b32 v6, 2, v4")
    k.e("v_xor_b32 v6, v6, v5")
    k.e("v_lshlrev_b32 v6, 4, v6")
    k.e(f"v_lshl_add_u32 v{VDMA}, v4, 8, v6")
    k.e(f"v_lshl_add_u32 v{WDMA}, v4, 13, v6")
    k.e(f"v_lshrrev_b32 v4, 3, v{vLANE}")
    k.e(f"v_and_b32 v5, 7, v{vLANE}")
    k.e(f"v_lshrrev_b32 v6, 4, v{vLANE}")
    k.e("s_movk_i32 s6, 1152")
    for c in range(4):
        k.e(f"v_add_u32 v7, {4*(c&1)}, v6")
        k.e("v_xor_b32 v7, v7, v5")
        k.e("v_lshlrev_b32 v7, 4, v7")
        k.e(f"v_add_u32 v{HDMA+c}, {8*c}, v4")
        k.e(f"v_mul_lo_u32 v{HDMA+c}, v{HDMA+c}, s6")
        k.e(f"v_add_u32 v{HDMA+c}, v{HDMA+c}, v7")
        if c: k.e(f"v_subrev_u32 v{HDMA+c}, {1024*c}, v{HDMA+c}")
    for c in range(4):
        k.e(f"v_add_u32 v{WQD+c}, {4*c*8192 - 1024*c}, v{WDMA}")
    k.e(f"v_bfe_u32 v4, v{vL31}, 1, 3")
    k.e(f"v_lshlrev_b32 v5, 7, v{vL31}")
    k.e("s_lshl_b32 s6, s5, 13")
    k.e("v_add_u32 v5, s6, v5")
    for ks in range(4):
        k.e(f"v_add_u32 v6, {2*ks}, v{vHALF}")
        k.e("v_xor_b32 v6, v6, v4")
        k.e(f"v_lshl_add_u32 v{HADDR+ks}, v6, 4, v5")
    for db in range(4):
        k.e(f"v_add_u32 v{WADDR+db}, 32768, v{WADDR+db}")
    k.e("s_lshl_b32 s30, s5, 12")
    k.e("s_lshl_b32 s28, s3, 19")
    k.e("s_add_u32 s28, s28, s30")
    k.e("s_mov_b32 s29, s28")
    k.e(f"s_mov_b32 s32, 0x{THR:x}")
    k.e("s_lshl_b32 s33, s3, 8")
    k.e("s_lshl_b32 s6, s5, 17")
    k.e("s_add_u32 s33, s33, s6")
    k.e("s_lshl_b32 s37, s5, 13")
    k.e("s_lshl_b32 s6, s4, 8")
    k.e("s_lshl_b32 s7, s5, 6")
    k.e("s_add_u32 s6, s6, s7")
    k.e("s_mul_i32 s34, s6, 1152")
    k.e("s_lshl_b32 s35, s6, 8")
    k.e("s_lshl_b32 s7, s3, 19")
    k.e("s_add_u32 s35, s35, s7")
    k.dbg_init(dbg)
    k.srd_finish()
    stamp = k.stamp
    stamp()
    vm = VM()
    QST = 49152
    def q_dma(st):
        b = (st % 3) * QST
        out = []
        for hh in range(2):
            out.append(f"s_add_u32 m0, s37, {b + 4096*hh}\n    s_nop 0")
            for c in range(4):
                out.append(f"buffer_load_dwordx4 v{HDMA+c}, s[20:23], {'s34' if hh == 0 else 's38'} offen offset:{1024*c} lds")
        out.append(f"s_add_u32 m0, s30, {b + 32768}\n    s_nop 0")
        for c in range(4):
            out.append(f"buffer_load_dwordx4 v{WQD+c}, s[16:19], s33 offen offset:{1024*c} lds")
        out.append("s_add_u32 s34, s34, 128")
        out.append("s_add_u32 s38, s38, 128")
        out.append(f"s_add_u32 s33, s33, {64*8192}")
        return out
    def emit_vm(ins, tag):
        k.e(ins)
        if ins.startswith("buffer"): vm.issue(tag)
    def kv_dma(which, slot, emit):
        out = []
        if which == 'K':
            out.append(f"s_add_u32 m0, s30, {slot*16384}\n    s_nop 0")
            for c in range(4):
                out.append(f"buffer_load_dwordx4 v{KDMA+c}, s[8:11], s28 offen offset:{1024*c} lds")
            out.append("s_add_u32 s28, s28, 16384")
        else:
            out.append(f"s_add_u32 m0, s30, {65536 + slot*16384}\n    s_nop 0")
            for c in range(4):
                out.append(f"buffer_load_dwordx4 v{VDMA}, s[12:15], s29 offen offset:{1024*c} lds")
            out.append("s_add_u32 s29, s29, 16384")
        if emit:
            for o in out:
                k.e(o)
                if o.startswith("buffer"): vm.issue(which)
        return out
    k.e("s_add_u32 s38, s34, 36864")
    for st in range(3):
        for ins in q_dma(st): emit_vm(ins, f"S{st}")
    ACC = 40
    NF = 9 * 16
    QPF = 5
    QBAR = 16 - QPF + 2
    def qbar_gap(st): return -1 if st == 0 else (st-1)*16 + QBAR - 1
    issue = {}
    for F in range(NF):
        issue.setdefault(max(F - QPF, qbar_gap(F // 16)), []).append(('W', F))
    for st in range(9):
        for ks in range(4):
            issue.setdefault(max(st*16 + ks*4 - 4, qbar_gap(st)), []).insert(0, ('H', st*4+ks))
    dsq = []; cur = [0]
    def set_stage(st):
        if cur[0] != st:
            d = ((st % 3) - (cur[0] % 3)) * QST
            for r in list(range(HADDR, HADDR+4)) + list(range(WADDR, WADDR+4)):
                k.e(f"v_add_u32 v{r}, {d}, v{r}" if d > 0 else f"v_subrev_u32 v{r}, {-d}, v{r}")
            cur[0] = st
    def do_reads(g):
        for kind, idx in issue.get(g, []):
            if kind == 'W':
                st, ks, db = idx // 16, (idx % 16) // 4, idx % 4
                set_stage(st)
                r = RING + 4 * (idx % 8)
                k.e(f"ds_read_b64_tr_b16 v[{r}:{r+1}], v{WADDR+db} offset:{ks*4096}")
                k.e(f"ds_read_b64_tr_b16 v[{r+2}:{r+3}], v{WADDR+db} offset:{ks*4096+1024}")
                dsq.extend([('W', idx)] * 2)
            else:
                st, ks = idx // 4, idx % 4
                set_stage(st)
                for q in range(2):
                    r = HR + 8 * (idx % 2) + 4 * q
                    k.e(f"ds_read_b128 v[{r}:{r+3}], v{HADDR+ks} offset:{4096*q}")
                    dsq.append(('H', idx))
    def need(tags):
        i = max(i for i, t in enumerate(dsq) if t in tags)
        return len(dsq) - 1 - i
    k.e(f"s_waitcnt vmcnt({vm.wait_n('S0')})")
    k.e("s_barrier")
    do_reads(-1)
    pend = []
    for F in range(NF):
        st, ks, db = F // 16, (F % 16) // 4, F % 4
        k.e(f"s_waitcnt lgkmcnt({min(15, need([('W', F), ('H', st*4+ks)]))})")
        for q in range(2):
            d = ACC + (q*4+db)*16
            k.e(mf(vr(d, 16), vr(RING + 4*(F % 8), 4), vr(HR + 8*((st*4+ks) % 2) + 4*q, 4), "0" if (st == 0 and ks == 0) else vr(d, 16)))
            if q == 0:
                if F % 16 == QBAR - 1:
                    if st + 1 < 9:
                        k.e(f"s_waitcnt vmcnt({vm.wait_n(f'S{st+1}')}) lgkmcnt(0)")
                    else:
                        k.e("s_waitcnt lgkmcnt(0)")
                    k.e("s_barrier")
                    if st + 3 < 9: pend = [(i, f"S{st+3}") for i in q_dma(st + 3)]
                    elif st == 6: pend = [(i, 'K') for t in range(3) for i in kv_dma('K', t, False)]
                    elif st == 7: pend = [(i, 'V') for t in range(2) for i in kv_dma('V', t, False)]
                do_reads(F)
            for _ in range(QDR):
                if pend:
                    i, t = pend.pop(0); emit_vm(i, t)
            if 2*F + q < 128: k.e(f"v_accvgpr_write_b32 a{2*F+q}, 0")
    assert not pend
    stamp()
    k.e("s_nop 15")
    k.e(f"s_mov_b32 s6, 0x{QSCALE:x}")
    for q in range(2):
        for db in range(4):
            for t in range(2):
                b = ACC + (q*4+db)*16 + 8*t
                for j in range(8):
                    k.e(f"v_mul_f32 v{b+j}, s6, v{b+j}")
                for j in range(4):
                    k.e(f"v_cvt_pk_bf16_f32 v{XT+j}, v{b+2*j}, v{b+2*j+1}")
                k.e("s_nop 1")
                k.e(f"v_permlane32_swap_b32 v{XT}, v{XT+2}")
                k.e(f"v_permlane32_swap_b32 v{XT+1}, v{XT+3}")
                k.e("s_nop 1")
                for j in range(4):
                    k.e(f"v_accvgpr_write_b32 a{QA + (q*8 + 2*db + t)*4 + j}, v{XT+j}")
    k.e(f"v_mov_b32 v{LSUM}, 0"); k.e(f"v_mov_b32 v{LSUM+1}, 0")
    k.e("s_waitcnt vmcnt(0)")
    k.e("s_barrier")
    k.e("s_lshl_b32 s6, s2, 2")
    k.e("s_add_u32 s6, s6, s5")
    k.e("s_mul_i32 s52, s6, 4608")
    k.e("s_mul_i32 s53, s6, 5184")
    k.e(f"v_lshlrev_b32 v{PFV}, 7, v{vLANE}")
    stamp()
    for ks in range(8):
        r = RING + 4 * ks
        k.e(f"ds_read_b128 v[{r}:{r+3}], v{KADDR+ks}")
    for ks in range(8):
        k.e(f"s_waitcnt lgkmcnt({7-ks})")
        r = RING + 4 * ks
        for q in range(2):
            d = SA_ + 16*q
            k.e(mf(vr(d, 16), vr(r, 4), ar(QA + (q*8+ks)*4, 4), "0" if ks == 0 else vr(d, 16)))
    k.e("s_nop 15")
    for q in range(2):
        rowmax(k, SA_, q, XT, XT+1)
        for i in range(16):
            k.e(f"v_sub_f32 v{NEGM+16*q+i}, 0, v{XT}")
            k.e(f"v_sub_f32 v{SA_+16*q+i}, v{SA_+16*q+i}, v{XT}")
    def frag_reads(it, f):
        sl = it % 4; sl1 = (it + 1) % 4
        r = RING + 4 * (f % 8)
        ph, j = f // 8, f % 8
        if ph == 0:
            return [f"ds_read_b128 v[{r}:{r+3}], v{KADDR+j} offset:{sl*16384 + 8192}"]
        if ph == 2:
            return [f"ds_read_b128 v[{r}:{r+3}], v{KADDR+j} offset:{sl1*16384}"]
        kk, db = j // 4, j % 4
        off = sl * 16384 + (8192 if ph == 3 else 0) + kk * 4096
        return [f"ds_read_b64_tr_b16 v[{r}:{r+1}], v{VADDR+db} offset:{off}",
                f"ds_read_b64_tr_b16 v[{r+2}:{r+3}], v{VADDR+db} offset:{off+2048}"]
    def nreads(f):
        return 1 if (f % 32) // 8 in (0, 2) else 2
    def mfma_of(t):
        f, q = t // 2, t % 2
        r = RING + 4 * (f % 8)
        ph, j = f // 8, f % 8
        if ph in (0, 2):
            S = SB_ if ph == 0 else SA_
            d = S + 16*q
            c = vr(NEGM + 16*q, 16) if j == 0 else vr(d, 16)
            return mf(vr(d, 16), vr(r, 4), ar(QA + (q*8+j)*4, 4), c)
        P = PA_ if ph == 1 else PB_
        kk, db = j // 4, j % 4
        o = (q*4+db)*16
        return mf(ar(o, 16), vr(r, 4), vr(P + 8*q + 4*kk, 4), ar(o, 16))
    smA = softmax_instrs(SA_, PA_)
    smB = softmax_instrs(SB_, PB_)
    winA = list(range(51, 64)) + list(range(0, 14))
    winB = list(range(19, 46))
    def distribute(ins, win):
        tot = sum(c for _, c in ins)
        res = {g: [] for g in win}
        acc = 0; i = 0
        for n, g in enumerate(win):
            target = tot * (n + 1) / len(win)
            while i < len(ins) and (acc + ins[i][1] / 2 <= target or n == len(win) - 1):
                res[g].append(ins[i][0]); acc += ins[i][1]; i += 1
        return res
    dA = distribute(smA, winA); dB = distribute(smB, winB)
    for g in range(51, 64):
        for ins in dA[g]: k.e(ins)
    for f in range(PF):
        for ins in frag_reads(0, f): k.e(ins)
    k.e("s_mov_b32 s31, 8")
    stamp()
    rares = []
    k.e(".p2align 6")
    k.label("attn_loop")
    for it in range(4):
        dmaK = kv_dma('K', (it + 3) % 4, False)
        dmaV = kv_dma('V', (it + 2) % 4, False)
        dma_at = {}
        seq = dmaK + dmaV
        slots = {'0': [1, 3, 5, 7, 9, 15, 17, 17, 47, 49, 49, 49],
                 '1': [15, 15, 16, 17, 18, 18, 47, 47, 48, 49, 50, 50],
                 '2': [1, 3, 9, 15, 17, 17, 25, 25, 33, 41, 47, 49],
                 '3': [13, 15, 17, 21, 27, 27, 43, 47, 49, 55, 61, 61],
                 '4': [5, 7, 15, 17, 23, 23, 37, 39, 47, 49, 57, 57]}[os.environ.get('DSL', '1')]
        for s_, ins in zip(slots, seq):
            dma_at.setdefault(s_, []).append(ins)
        for t in range(64):
            f, q = t // 2, t % 2
            if t == 0:
                k.e(f"s_waitcnt vmcnt({9 if it in (1, 2) else 8})")
                k.e("s_barrier")
            if q == 0:
                n = sum(nreads(f + x) for x in range(1, PF))
                k.e(f"s_waitcnt lgkmcnt({n})")
            k.e(mfma_of(t))
            if q == 0:
                f2 = f + PF
                for ins in frag_reads(it + f2 // 32, f2 % 32): k.e(ins)
            for ins in dma_at.get(t, []): k.e(ins)
            if it == 0 and t == 62:
                k.e(f"buffer_load_dword v{PFV+1}, v{PFV}, s[40:43], s52 offen")
                k.e("s_mov_b64 s[40:41], s[44:45]"); k.e("s_mov_b32 s42, s46")
                k.e("s_mov_b64 s[44:45], s[48:49]"); k.e("s_mov_b32 s46, s50")
                k.e("s_mov_b32 s50, 0"); k.e("s_mov_b32 s52, s53")
            for ins in dA.get(t, []): k.e(ins)
            for ins in dB.get(t, []): k.e(ins)
            if t in (14, 46):
                lab = k.newlabel("rare"); ret = k.newlabel("ret")
                k.e(f"v_max_f32 v{TMP+4}, v{LT}, v{LT+1}")
                k.e(f"v_cmp_lt_f32 vcc, s32, v{TMP+4}")
                k.e(f"s_cbranch_vccnz {lab}")
                k.label(ret)
                k.e(f"v_add_f32 v{LSUM}, v{LSUM}, v{LT}")
                k.e(f"v_add_f32 v{LSUM+1}, v{LSUM+1}, v{LT+1}")
                if t == 14: rares.append((lab, ret, SA_, SB_, PA_))
                else: rares.append((lab, ret, SB_, SA_, PB_))
    k.e("s_sub_u32 s31, s31, 1")
    k.e("s_cmp_lg_u32 s31, 0")
    k.e("s_cbranch_scc1 attn_loop")
    stamp()
    k.e("s_nop 15")
    k.e("s_waitcnt vmcnt(0) lgkmcnt(0)")
    for q in range(2):
        l = LSUM + q
        k.e(f"v_mov_b32 v{XT}, v{l}")
        k.e("s_nop 1")
        k.e(f"v_permlane32_swap_b32 v{XT}, v{l}")
        k.e("s_nop 1")
        k.e(f"v_add_f32 v{l}, v{l}, v{XT}")
        k.e(f"v_rcp_f32 v{l}, v{l}")
        k.e("s_nop 0")
    k.e("s_barrier")
    k.e("s_mul_i32 s6, s5, 17408")
    k.e(f"v_mul_u32_u24 v4, 272, v{vL31}")
    k.e(f"v_lshl_add_u32 v4, v{vHALF}, 4, v4")
    k.e("v_add_u32 v4, s6, v4")
    k.e(f"v_lshrrev_b32 v5, 4, v{vLANE}")
    k.e(f"v_and_b32 v6, 15, v{vLANE}")
    k.e("v_lshlrev_b32 v6, 4, v6")
    k.e("v_mul_u32_u24 v7, 272, v5")
    k.e("v_add3_u32 v7, v7, v6, s6")
    k.e("v_lshl_add_u32 v6, v5, 8, v6")
    n = 0
    for q in range(2):
        for db in range(4):
            for gp in range(2):
                T = XT + 12 * (n % 2); n += 1
                for j in range(8):
                    k.e(f"v_accvgpr_read_b32 v{T+4+j}, a{(q*4+db)*16 + 8*gp + j}")
                for j in range(8):
                    k.e(f"v_mul_f32 v{T+4+j}, v{T+4+j}, v{LSUM+q}")
                for j in range(4):
                    k.e(f"v_cvt_pk_bf16_f32 v{T+j}, v{T+4+2*j}, v{T+5+2*j}")
                k.e("s_nop 1")
                k.e(f"v_permlane32_swap_b32 v{T}, v{T+2}")
                k.e(f"v_permlane32_swap_b32 v{T+1}, v{T+3}")
                k.e(f"ds_write_b128 v4, v[{T}:{T+3}] offset:{32*272*q + 64*db + 32*gp}")
    k.e("s_waitcnt lgkmcnt(0)")
    for j in range(16):
        k.e(f"ds_read_b128 v[{40+4*j}:{43+4*j}], v7 offset:{4*272*j}")
    for j in range(16):
        k.e(f"s_waitcnt lgkmcnt({15-j})")
        k.e(f"buffer_store_dwordx4 v[{40+4*j}:{43+4*j}], v6, s[24:27], s35 offen offset:{1024*(j%4)} sc1")
        if j % 4 == 3: k.e("s_add_u32 s35, s35, 4096")
    k.dbg_flush("attn_done")
    k.tl_end()
    k.label("attn_done")
    k.e("s_endpgm")
    for r in rares:
        rare_path(k, *r)
    return k
```

```python
import os
from gen_common import *
from gen_attn import VM, mf, vr, ar
NLOG2E = 0xbfb8aa3b

def silu_rowpiece(k, R, T):
    for j in range(4):
        k.e(f"v_lshlrev_b32 v{T+2*j}, 16, v{R+j}")
        k.e(f"v_and_b32 v{T+2*j+1}, 0xffff0000, v{R+j}")
    for j in range(8): k.e(f"v_mul_f32 v{T+8+j}, s25, v{T+j}")
    for j in range(8): k.e(f"v_exp_f32 v{T+8+j}, v{T+8+j}")
    for j in range(8): k.e(f"v_add_f32 v{T+8+j}, 1.0, v{T+8+j}")
    for j in range(8): k.e(f"v_rcp_f32 v{T+8+j}, v{T+8+j}")
    for j in range(8): k.e(f"v_mul_f32 v{T+j}, v{T+j}, v{T+8+j}")
    for j in range(4): k.e(f"v_cvt_pk_bf16_f32 v{R+j}, v{T+2*j}, v{T+2*j+1}")

def gen_ffn1():
    name = "ffn1_kernel"
    ldx, ldw = 1152, 9216
    XB = 16384; STAGE = 36864; H1 = 3*STAGE; H1ST = 336; H2ST = 272
    NBP = [5, 4]; NST = 18
    PFD = 8; NR = 10
    k = Kern(name, (256,1,1), (512,1,1), H1 + 128*H1ST, nvgpr=256, nsgpr=102)
    k.tl_start()
    ACC = 100; WR = 32; XR = 80; XA = 4; WA = 8; XD = 10; WD = 14
    done = f"{name}_done"
    k.e("s_cmp_ge_u32 s2, 256")
    k.e(f"s_cbranch_scc1 {done}")
    k.srd(8, 'ws', 2048*576*2, L.H2); k.srd(12, 'w1', 576*4608*2); k.srd(16, 'ws', 2048*4608*2, L.U)
    k.dbg_init(os.environ.get('DBG','0')=='1')
    k.e("v_lshrrev_b32 v4, 6, v0")
    k.e("v_and_b32 v1, 63, v0")
    k.e("v_readfirstlane_b32 s5, v4")
    k.e("v_and_b32 v2, 31, v0")
    k.e("v_lshrrev_b32 v3, 5, v1")
    k.e("s_and_b32 s6, s2, 7"); k.e("s_lshr_b32 s7, s2, 3")
    k.e("s_and_b32 s3, s6, 1"); k.e("s_lshl_b32 s3, s3, 3"); k.e("s_and_b32 s24, s7, 7"); k.e("s_add_u32 s3, s3, s24")
    k.e("s_lshr_b32 s4, s6, 1"); k.e("s_lshl_b32 s4, s4, 2"); k.e("s_lshr_b32 s24, s7, 3"); k.e("s_add_u32 s4, s4, s24")
    k.e("s_lshl_b32 s24, s3, 7")
    k.e("s_lshl_b32 s22, s24, 7")
    k.e("s_mul_i32 s30, s4, 36")
    k.e(f"s_mov_b32 s25, 0x{NLOG2E:x}")
    k.srd_finish()
    k.stamp()
    k.e("s_cmp_ge_u32 s5, 4")
    k.e(f"s_cbranch_scc1 {name}_loader")
    k.e("s_lshl_b32 s26, s5, 12")
    k.e("v_bfe_u32 v28, v2, 1, 3")
    k.e("v_lshlrev_b32 v29, 7, v2")
    k.e("v_add_u32 v29, s26, v29")
    for i in range(4):
        k.e(f"v_add_u32 v30, {2*i}, v3")
        k.e("v_xor_b32 v30, v30, v28")
        k.e(f"v_lshl_add_u32 v{XA+i}, v30, 4, v29")
    k.e("v_bfe_u32 v28, v1, 2, 2")
    k.e("v_lshl_add_u32 v28, v3, 3, v28")
    k.e("v_mul_u32_u24 v28, 320, v28")
    k.e("v_bfe_u32 v29, v1, 4, 1")
    k.e("v_lshl_add_u32 v28, v29, 5, v28")
    k.e("v_and_b32 v29, 3, v1")
    k.e(f"v_lshl_add_u32 v{WA}, v29, 3, v28")
    k.e("s_lshl_b32 s26, s5, 5")
    k.e("v_add_u32 v28, s26, v2")
    k.e(f"v_mul_u32_u24 v9, {H1ST}, v28")
    k.e("v_lshl_add_u32 v9, v3, 4, v9")
    k.e(f"v_add_u32 v9, {H1}, v9")
    k.e(f"v_mul_u32_u24 v10, {H2ST}, v28")
    k.e("v_lshl_add_u32 v10, v3, 4, v10")
    ml = []
    for s in range(NST):
        p = s // 9
        for ks in range(4):
            for nb in range(NBP[p]):
                ml.append((s, ks, nb, nb + 5*p))
    first = {}
    for F, (s, ks, nb, a) in enumerate(ml): first.setdefault(s, F)
    cnt = {s: 4*NBP[s//9] for s in range(NST)}
    def barpos(s): return first[s] + cnt[s] - PFD + 3 - 1
    def bar_gap(s): return -1 if s == 0 else barpos(s-1)
    issue = {}
    for F, (s, ks, nb, a) in enumerate(ml):
        issue.setdefault(max(F - PFD, bar_gap(s)), []).append(('W', F))
        if nb == 0:
            issue.setdefault(max(F - PFD - 1, bar_gap(s)), []).insert(0, ('X', s*4+ks))
    dsq = []; cur = [0]
    def set_stage(s):
        if cur[0] != s:
            d = ((s % 3) - (cur[0] % 3)) * STAGE
            for r in list(range(XA, XA+4)) + [WA]:
                k.e(f"v_add_u32 v{r}, {d}, v{r}" if d > 0 else f"v_subrev_u32 v{r}, {-d}, v{r}")
            cur[0] = s
    def do_reads(g):
        for kind, idx in issue.get(g, []):
            if kind == 'W':
                s, ks, nb, a = ml[idx]
                set_stage(s)
                r = WR + 4 * (idx % NR)
                off = XB + nb*64 + ks*5120
                k.e(f"ds_read_b64_tr_b16 v[{r}:{r+1}], v{WA} offset:{off}")
                k.e(f"ds_read_b64_tr_b16 v[{r+2}:{r+3}], v{WA} offset:{off+1280}")
                dsq.extend([('W', idx)] * 2)
            else:
                set_stage(idx // 4)
                r = XR + 4 * (idx % 4)
                k.e(f"ds_read_b128 v[{r}:{r+3}], v{XA+idx%4}")
                dsq.append(('X', idx))
    def need(tags):
        i = max(i for i, t in enumerate(dsq) if t in tags)
        return len(dsq) - 1 - i
    def cvt_group(b, T, waddr, off):
        out = [f"v_cvt_pk_bf16_f32 v{T+j}, v{b+2*j}, v{b+2*j+1}" for j in range(4)]
        out += ["s_nop 1", f"v_permlane32_swap_b32 v{T}, v{T+2}", f"v_permlane32_swap_b32 v{T+1}, v{T+3}",
                f"ds_write_b128 v{waddr}, v[{T}:{T+3}] offset:{off}"]
        return out
    fillA = []
    for nb in range(5):
        for gp in range(2):
            fillA += cvt_group(ACC + 16*nb + 8*gp, 24 + 4*gp, 9, 64*nb + 32*gp)
    k.e("s_barrier")
    k.stamp()
    do_reads(-1)
    for F, (s, ks, nb, a) in enumerate(ml):
        k.e(f"s_waitcnt lgkmcnt({min(need([('W', F), ('X', s*4+ks)]), 15)})")
        d = ACC + 16*a
        k.e(mf(vr(d, 16), vr(WR + 4*(F % NR), 4), vr(XR + 4*((s*4+ks) % 4), 4), "0" if (s % 9 == 0 and ks == 0) else vr(d, 16)))
        if F >= first[9] + 6:
            for _ in range(8):
                if fillA:
                    ins = fillA.pop(0); k.e(ins)
                    if ins.startswith("ds_write"): dsq.append(('w', F))
        if F == barpos(s) and s + 1 < NST:
            k.e("s_waitcnt lgkmcnt(0)")
            k.e("s_barrier")
        do_reads(F)
    assert not fillA and first[9] + 6 + 10 < barpos(10)
    k.stamp()
    k.e("s_nop 15")
    k.e("s_barrier")
    for nb in range(4):
        for gp in range(2):
            for ins in cvt_group(ACC + 80 + 16*nb + 8*gp, WR + 4*((2*nb+gp) % 2), 10, 64*nb + 32*gp): k.e(ins)
    k.e("s_waitcnt lgkmcnt(0)")
    k.e(f"s_branch {name}_store")
    k.label(f"{name}_loader")
    k.e("s_sub_u32 s5, s5, 4")
    k.e("s_lshl_b32 s27, s5, 5"); k.e("s_add_u32 s27, s27, s24")
    k.e(f"s_mul_i32 s20, s27, {ldx}")
    k.e("s_lshl_b32 s27, s5, 4"); k.e(f"s_mul_i32 s21, s27, {ldw}")
    k.e("s_mul_i32 s27, s4, 576"); k.e("s_add_u32 s21, s21, s27")
    k.e("s_lshl_b32 s26, s5, 12")
    k.e("s_mul_i32 s27, s5, 5120"); k.e(f"s_add_u32 s27, s27, {XB}")
    k.e("v_lshrrev_b32 v28, 3, v1")
    k.e("v_and_b32 v29, 7, v1")
    k.e("v_lshrrev_b32 v30, 4, v1")
    k.e(f"s_mov_b32 s28, {ldx}")
    for c in range(4):
        k.e(f"v_add_u32 v31, {4*(c&1)}, v30")
        k.e("v_xor_b32 v31, v31, v29")
        k.e("v_lshlrev_b32 v31, 4, v31")
        k.e(f"v_add_u32 v{XD+c}, {8*c}, v28")
        k.e(f"v_mul_lo_u32 v{XD+c}, v{XD+c}, s28")
        k.e(f"v_add_u32 v{XD+c}, v{XD+c}, v31")
        if c: k.e(f"v_subrev_u32 v{XD+c}, {1024*c}, v{XD+c}")
    for P in range(320): assert (P * 3277) >> 16 == P // 20
    k.e(f"s_mov_b32 s28, {ldw}")
    for j in range(5):
        k.e(f"v_add_u32 v28, {64*j}, v1")
        k.e("v_mul_u32_u24 v29, 3277, v28")
        k.e("v_lshrrev_b32 v29, 16, v29")
        k.e("v_mul_u32_u24 v30, 20, v29")
        k.e("v_sub_u32 v28, v28, v30")
        k.e(f"v_mul_lo_u32 v{WD+j}, v29, s28")
        k.e(f"v_lshl_add_u32 v{WD+j}, v28, 4, v{WD+j}")
        if j % 4: k.e(f"v_subrev_u32 v{WD+j}, {1024*(j%4)}, v{WD+j}")
        k.e(f"v_mul_u32_u24 v30, {H1ST}, v29")
        k.e(f"v_lshl_add_u32 v{40+j}, v28, 4, v30")
        k.e("v_add_u32 v31, s30, v28")
        k.e("v_lshlrev_b32 v29, 7, v29")
        k.e("v_and_b32 v28, 7, v31")
        k.e("v_lshl_add_u32 v29, v28, 4, v29")
        k.e("v_lshrrev_b32 v31, 3, v31")
        k.e(f"v_lshl_add_u32 v{45+j}, v31, 18, v29")
    k.e(f"s_mul_i32 s28, s5, {32*H1ST}"); k.e(f"s_add_u32 s28, s28, {H1}")
    for j in range(5): k.e(f"v_add_u32 v{40+j}, s28, v{40+j}")
    k.e("s_lshl_b32 s29, s5, 12"); k.e("s_add_u32 s29, s29, s22")
    vm = VM()
    def dma(s):
        b = (s % 3) * STAGE
        k.e(f"s_add_u32 m0, s26, {b}"); k.e("s_nop 0")
        for c in range(4):
            k.e(f"buffer_load_dwordx4 v{XD+c}, s[8:11], s20 offen offset:{1024*c} lds"); vm.issue(s)
        for j in range(5):
            if j % 4 == 0:
                k.e(f"s_add_u32 m0, s27, {b + 4096*(j//4)}"); k.e("s_nop 0")
            k.e(f"buffer_load_dwordx4 v{WD+j}, s[12:15], s21 offen offset:{1024*(j%4)} lds"); vm.issue(s)
        if s == 8:
            k.e(f"s_sub_u32 s20, s20, {128*8}")
            k.e(f"s_sub_u32 s21, s21, {64*ldw*8 - 320}")
        else:
            k.e("s_add_u32 s20, s20, 128")
            k.e(f"s_add_u32 s21, s21, {64*ldw}")
    groups = [(rep, j) for rep in range(2) for j in range(5)]
    def h1_group(g):
        rep, j = g
        R = 52 + 4 * ((rep*5+j) % 2)
        k.e(f"ds_read_b128 v[{R}:{R+3}], v{40+j} offset:{16*H1ST*rep}")
        k.e("s_waitcnt lgkmcnt(0)")
        silu_rowpiece(k, R, 64)
        k.e(f"buffer_store_dwordx4 v[{R}:{R+3}], v{45+j}, s[16:19], s29 offen offset:{2048*rep} sc1"); vm.issue('st')
    for s in range(3): dma(s)
    k.e(f"s_waitcnt vmcnt({vm.wait_n(0)})")
    k.e("s_barrier")
    for s in range(NST - 1):
        k.e(f"s_waitcnt vmcnt({min(63, vm.wait_n(s+1))})")
        k.e("s_barrier")
        if s + 3 < NST: dma(s + 3)
        if s >= 10:
            for _ in range(int(os.environ.get('GPS', '2'))):
                if groups: h1_group(groups.pop(0))
    while groups: h1_group(groups.pop(0))
    k.e("s_barrier")
    k.e("s_add_u32 s5, s5, 4")
    k.label(f"{name}_store")
    k.e("s_barrier")
    k.e("v_and_b32 v28, 15, v1")
    k.e("v_lshrrev_b32 v29, 4, v1")
    k.e("s_lshl_b32 s26, s5, 4")
    k.e("v_add_u32 v29, s26, v29")
    k.e(f"v_mul_u32_u24 v30, {H2ST}, v29")
    k.e("v_lshl_add_u32 v30, v28, 4, v30")
    k.e("v_add_u32 v31, s30, v28")
    k.e("v_add_u32 v31, 20, v31")
    k.e("v_lshlrev_b32 v29, 7, v29")
    k.e("v_and_b32 v28, 7, v31")
    k.e("v_lshl_add_u32 v29, v28, 4, v29")
    k.e("v_lshrrev_b32 v31, 3, v31")
    k.e("v_lshl_add_u32 v31, v31, 18, v29")
    for j in range(4):
        k.e(f"ds_read_b128 v[{32+4*j}:{35+4*j}], v30 offset:{4*H2ST*j}")
    for j in range(4):
        k.e(f"s_waitcnt lgkmcnt({3-j})")
        silu_rowpiece(k, 32+4*j, 64)
        k.e(f"buffer_store_dwordx4 v[{32+4*j}:{35+4*j}], v31, s[16:19], s22 offen offset:{512*j} sc1")
    k.dbg_flush(done)
    k.tl_end()
    k.label(done)
    k.e("s_endpgm")
    return k
```
